```python
import torch

def _softmax(x, axis=-1):
    return torch.softmax(x, dim=axis)
def _gelu(x):
    return torch.nn.functional.gelu(x, approximate="tanh")
def _silu(x):
    return torch.nn.functional.silu(x)
def _sigmoid(x):
    return torch.sigmoid(x)
def _layernorm(x, axis=-1, eps=1e-5):
    m = x.mean(dim=axis, keepdim=True)
    v = x.var(dim=axis, keepdim=True, unbiased=False)
    return (x - m) / torch.sqrt(v + eps)
def _scatter_add(tgt, idx, src, axis=0):
    return tgt.clone().index_add_(axis, idx, src)
def _segment_sum(src, seg, n):
    out = torch.zeros((n,) + src.shape[1:], dtype=src.dtype)
    return out.index_add_(0, seg, src)
def _pad(x, pw):
    flat = tuple(v for pair in reversed(pw) for v in pair)
    return torch.nn.functional.pad(x, flat)

kernel_name = 'gated_mix__ssm_conv_s4d__ssm_conv_s5__prompt'

def setup_inputs():

    _w = (lambda a: (lambda t: t.to(torch.bfloat16) if t.is_floating_point() else t)(torch.as_tensor(a)))
    def _A_setup():
        Bsz, L, D, N = 1, 2048, 640, 128
        return {
            "u": _w((lambda *s: torch.randn(*s, dtype=torch.bfloat16) * 0.05)(Bsz, L, D)),
            "log_A_real": _w((lambda *s: torch.randn(*s, dtype=torch.bfloat16) * 3.2)(D, N) * 0.5),
            "A_imag": _w((lambda *s: torch.randn(*s, dtype=torch.bfloat16) * 0.05)(D, N) * 3.14),
            "C_real": _w((lambda *s: torch.randn(*s, dtype=torch.bfloat16) * 0.1)(D, N) / N ** 0.5),
            "C_imag": _w((lambda *s: torch.randn(*s, dtype=torch.bfloat16) * 0.1)(D, N) / N ** 0.5),
            "log_dt": _w((lambda *s: torch.randn(*s, dtype=torch.bfloat16) * 0.05)(D) * 0.5 - 4.0),
            "D_skip": _w((lambda *s: torch.randn(*s, dtype=torch.bfloat16) * 0.05)(D)),
        }
    _A_in = _A_setup()

    def _B_setup():
        B, S, D = 1, 2048, 640
        P = D
        Lambda_re = -0.5 * (lambda _x: torch.exp(torch.as_tensor(_x)))((lambda *s: torch.randn(*s, dtype=torch.bfloat16) * 0.2)(P))
        Lambda_im = (lambda *s: torch.randn(*s, dtype=torch.bfloat16) * 0.4)(P) * 1.0
        B_re = (lambda *s: torch.randn(*s, dtype=torch.bfloat16) * 0.2)(P, D) * (D ** -0.5)
        B_im = (lambda *s: torch.randn(*s, dtype=torch.bfloat16) * 0.2)(P, D) * (D ** -0.5)
        C_re = (lambda *s: torch.randn(*s, dtype=torch.bfloat16) * 0.2)(D, P) * (P ** -0.5)
        C_im = (lambda *s: torch.randn(*s, dtype=torch.bfloat16) * 0.2)(D, P) * (P ** -0.5)
        log_dt = (lambda *s: torch.randn(*s, dtype=torch.bfloat16) * 0.2)(P) * 0.3 - 2.0
        Dskip = (lambda *s: torch.randn(*s, dtype=torch.bfloat16) * 0.05)(D)
        return {
            "x": _w((lambda *s: torch.randn(*s, dtype=torch.bfloat16) * 0.05)(B, S, D)),
            "Lambda_re": _w(Lambda_re),
            "Lambda_im": _w(Lambda_im),
            "B_re": _w(B_re),
            "B_im": _w(B_im),
            "C_re": _w(C_re),
            "C_im": _w(C_im),
            "log_dt": _w(log_dt),
            "Dskip": _w(Dskip),
        }
    _B_in = _B_setup()

    return {
        "A_u": _A_in["u"],
        "A_log_A_real": _A_in["log_A_real"],
        "A_A_imag": _A_in["A_imag"],
        "A_C_real": _A_in["C_real"],
        "A_C_imag": _A_in["C_imag"],
        "A_log_dt": _A_in["log_dt"],
        "A_D_skip": _A_in["D_skip"],
        "B_x": _B_in["x"],
        "B_Lambda_re": _B_in["Lambda_re"],
        "B_Lambda_im": _B_in["Lambda_im"],
        "B_B_re": _B_in["B_re"],
        "B_B_im": _B_in["B_im"],
        "B_C_re": _B_in["C_re"],
        "B_C_im": _B_in["C_im"],
        "B_log_dt": _B_in["log_dt"],
        "B_Dskip": _B_in["Dskip"],
        "gate_w": _w((lambda *s: torch.randn(*s, dtype=torch.bfloat16) * 0.05)(640) * 16.0),
    }

def reference(A_u, A_log_A_real, A_A_imag, A_C_real, A_C_imag, A_log_dt, A_D_skip, B_x, B_Lambda_re, B_Lambda_im, B_B_re, B_B_im, B_C_re, B_C_im, B_log_dt, B_Dskip, gate_w):
    def _A_ref(u, log_A_real, A_imag, C_real, C_imag, log_dt, D_skip):
        L = u.shape[1]
        dt = torch.exp(log_dt)
        A = -torch.exp(log_A_real) + 1j * A_imag
        C = (C_real + 1j * C_imag) * dt[:, None]
        pos = (lambda x, dt: x.to(dt))(torch.arange(L), log_dt.dtype)
        P = torch.exp((A * dt[:, None])[:, :, None] * pos[None, None, :])
        K = 2.0 * torch.einsum("dn,dnl->dl", C, P).real
        L2 = 2 * L
        u_t = (lambda x, *d: x.permute(*d))(u, 0, 2, 1)
        Kf = (lambda x, *a, **k: torch.fft.rfft(x.float(), *a, **k))(K, L2)
        Uf = (lambda x, *a, **k: torch.fft.rfft(x.float(), *a, **k))(u_t, L2)
        y = (lambda x, *a, **k: torch.fft.irfft(x, *a, **k).to(torch.bfloat16))(Uf * Kf[None, :, :], L2)[:, :, :L]
        y = (lambda x, *d: x.permute(*d))(y, 0, 2, 1)
        return y + u * D_skip[None, None, :]

    def _B_ref(x, Lambda_re, Lambda_im, B_re, B_im, C_re, C_im, log_dt, Dskip):
        Bsz, L, H = x.shape
        Lam = Lambda_re + 1j * Lambda_im
        Bmat = B_re + 1j * B_im
        Cmat = C_re + 1j * C_im
        dt = torch.exp(log_dt)
        Lam_bar = torch.exp(dt * Lam)
        B_bar = ((Lam_bar - 1.0) / Lam)[:, None] * Bmat
        Bu = torch.einsum("bld,pd->blp", x + 0j, B_bar)
        h = torch.zeros_like(Bu[:, 0, :])
        hs = []
        for t in range(L):
            h = Lam_bar[None, :] * h + Bu[:, t, :]
            hs.append(h)
        hseq = torch.stack(hs, 1)
        y = 2.0 * torch.einsum("blp,dp->bld", hseq, Cmat).real + x * Dskip[None, None, :]
        return y

    x = A_u
    g = _sigmoid((x * gate_w).sum(-1, keepdims=True))
    a = _A_ref(x, A_log_A_real, A_A_imag, A_C_real, A_C_imag, A_log_dt, A_D_skip)
    b = _B_ref(x, B_Lambda_re, B_Lambda_im, B_B_re, B_B_im, B_C_re, B_C_im, B_log_dt, B_Dskip)
    return g * a + (1 - g) * b
```

```python
class Asm:
    def __init__(self):
        self.lines = []
        self._lab = 0
    def e(self, s=""):
        for ln in s.split("\n"):
            self.lines.append("    " + ln.strip() if ln.strip() and not ln.strip().endswith(":") else ln.strip())
    def c(self, s):
        self.lines.append("    ; " + s)
    def label(self, name):
        self.lines.append(name + ":")
    def newlabel(self, base="L"):
        self._lab += 1
        return f"{base}_{self._lab}"
    def text(self):
        return "\n".join(self.lines) + "\n"

def v(i, n=1):
    return f"v{i}" if n == 1 else f"v[{i}:{i+n-1}]"
def s(i, n=1):
    return f"s{i}" if n == 1 else f"s[{i}:{i+n-1}]"
def a(i, n=1):
    return f"a{i}" if n == 1 else f"a[{i}:{i+n-1}]"

class RegAlloc:
    def __init__(self, start, limit, kind):
        self.cur = start; self.limit = limit; self.kind = kind; self.names = {}; self.hi = start
    def alloc(self, n=1, align=1, name=None):
        if n >= 2 and align < 2: align = 2
        c = (self.cur + align - 1) // align * align
        assert c + n <= self.limit, f"out of {self.kind} regs allocating {name} ({c}+{n} > {self.limit})"
        self.cur = c + n
        self.hi = max(self.hi, self.cur)
        if name: self.names[name] = (c, n)
        return c
    def mark(self): return self.cur
    def release(self, m): self.cur = m

SRD3 = 0x00020000

def srd(A, dst, ptr, nbytes):
    A.e(f"s_mov_b32 s{dst}, s{ptr}")
    A.e(f"s_and_b32 s{dst+1}, s{ptr+1}, 0xffff")
    A.e(f"s_mov_b32 s{dst+2}, {nbytes}")
    A.e(f"s_mov_b32 s{dst+3}, 0x{SRD3:08x}")

def srd_off(A, dst, ptr, off, nbytes):
    A.e(f"s_add_u32 s{dst}, s{ptr}, {off}")
    A.e(f"s_addc_u32 s{dst+1}, s{ptr+1}, 0")
    A.e(f"s_and_b32 s{dst+1}, s{dst+1}, 0xffff")
    A.e(f"s_mov_b32 s{dst+2}, {nbytes}")
    A.e(f"s_mov_b32 s{dst+3}, 0x{SRD3:08x}")

def kernel_header(name):
    return f""".globl {name}
.p2align 8
.type {name},@function
{name}:
"""
def kernel_desc(name, vgprs, sgprs=102, accum=None):
    if accum is None: accum = (vgprs + 3) // 4 * 4
    return f""".amdhsa_kernel {name}
  .amdhsa_next_free_vgpr {vgprs}
  .amdhsa_next_free_sgpr {sgprs}
  .amdhsa_accum_offset {accum}
  .amdhsa_group_segment_fixed_size 0
  .amdhsa_kernarg_size 160
  .amdhsa_user_sgpr_count 2
  .amdhsa_user_sgpr_kernarg_segment_ptr 1
  .amdhsa_system_sgpr_workgroup_id_x 1
.end_amdhsa_kernel
"""
KA = dict(u=0, logA=8, Aim=16, Cre_a=24, Cim_a=32, logdt_a=40, Dskip_a=48, x=56, Lre=64, Lim=72,
          Bre=80, Bim=88, Cre=96, Cim=104, logdt_b=112, Dskip_b=120, gate=128, out=136, dbg=144, ws=152)
WS_H  = 0
WS_H_SZ = 128 * 40 * 1024
WS_S  = WS_H + WS_H_SZ
WS_S_SZ = 256 * 640
WS_G  = WS_S + WS_S_SZ
WS_G_SZ = 2048 * 4
WS_UT = WS_G + WS_G_SZ
WS_UT_SZ = 640 * 4096
KR_STRIDE = 4160
WS_KR = WS_UT + WS_UT_SZ
WS_KR_SZ = 640 * KR_STRIDE
WS_AT = WS_KR + WS_KR_SZ
WS_AT_SZ = 640 * 4096
WS_GEN = WS_AT + WS_AT_SZ
WS_FL = WS_GEN + 256
WS_END = WS_FL + 256 * 128

WS_TS = 16 << 20
class Stamps:
    def __init__(self, A, S, n, enable):
        self.A = A; self.n = n; self.enable = enable; self.k = 0
        if enable:
            self.base = S.alloc(2 * n + 2, 2)
            self.rT = S.alloc(4, 4)
    def mark(self):
        if not self.enable: return
        assert self.k < self.n
        self.A.e(f"s_memtime s[{self.base+2*self.k}:{self.base+2*self.k+1}]")
        self.k += 1
    def flush(self, pWs, wg, vtmp, swave):
        if not self.enable: return
        A = self.A
        L = A.newlabel("stamp_skip")
        rt = self.base + 2 * self.n
        A.e(f"s_memrealtime s[{rt}:{rt+1}]")
        A.e("s_waitcnt lgkmcnt(0)")
        A.e(f"s_cmp_lg_u32 s{swave}, 0")
        A.e(f"s_cbranch_scc1 {L}")
        srd_off(A, self.rT, pWs, WS_TS, 1 << 20)
        A.e(f"s_lshl_b32 s{rt+1}, {wg}, 7")
        A.e(f"v_mov_b32 v{vtmp}, s{rt+1}")
        for i in range(self.k):
            A.e(f"v_mov_b32 v{vtmp+1}, s{self.base+2*i}")
            A.e(f"buffer_store_dword v{vtmp+1}, v{vtmp}, s[{self.rT}:{self.rT+3}], 0 offen offset:{4*i}")
        A.e(f"v_mov_b32 v{vtmp+1}, s{rt}")
        A.e(f"buffer_store_dword v{vtmp+1}, v{vtmp}, s[{self.rT}:{self.rT+3}], 0 offen offset:124")
        A.e("s_waitcnt vmcnt(0)")
        A.label(L)
```

```python
from asmlib import *

CV_WAVE_LDS = 4 * 4160 + 4608
def gen_cv(A, wg, stamps=False, handoff=False, nch=3):
    S = RegAlloc(8, 100, "s"); V = RegAlloc(1, 256, "v")
    ST = Stamps(A, S, 6, stamps); ST.mark()
    pWs = S.alloc(2, 2); pDs = S.alloc(2, 2)
    rK = S.alloc(4, 4); rU = S.alloc(4, 4); rA = S.alloc(4, 4); rD = S.alloc(4, 4)
    sW = S.alloc(); sD = S.alloc(); sT0 = S.alloc(); sT1 = S.alloc(); sBase = S.alloc(); sExec = S.alloc(2, 2)
    Lexit = A.newlabel("cvexit")
    A.c("==== CV ====")
    A.e(f"s_load_dwordx2 {s(pWs,2)}, s[0:1], {KA['ws']}")
    A.e(f"s_load_dwordx2 {s(pDs,2)}, s[0:1], {KA['Dskip_a']}")
    vLane = V.alloc(); T = V.alloc(8, 2); t = [T + i for i in range(8)]
    A.e(f"v_lshrrev_b32 {v(t[0])}, 6, v0")
    A.e(f"v_and_b32 {v(vLane)}, 63, v0")
    A.e(f"v_readfirstlane_b32 s{sW}, {v(t[0])}")
    A.e("s_nop 3")
    A.e(f"s_mul_i32 s{sD}, {wg}, {nch}")
    A.e(f"s_add_u32 s{sD}, s{sD}, s{sW}")
    A.e(f"s_cmp_ge_u32 s{sW}, {nch}")
    A.e(f"s_cbranch_scc1 {Lexit}")
    A.e(f"s_cmp_ge_u32 s{sD}, 640")
    A.e(f"s_cbranch_scc1 {Lexit}")
    A.e(f"s_mul_i32 s{sBase}, s{sW}, {CV_WAVE_LDS}")
    vL16 = V.alloc()
    A.e(f"v_lshlrev_b32 {v(vL16)}, 4, {v(vLane)}")
    A.e("s_waitcnt lgkmcnt(0)")
    srd_off(A, rK, pWs, WS_KR, WS_KR_SZ); srd_off(A, rU, pWs, WS_UT, WS_UT_SZ)
    srd_off(A, rA, pWs, WS_AT, WS_AT_SZ); srd(A, rD, pDs, 1280)
    sKo = S.alloc(); sUo = S.alloc()
    A.e(f"s_mul_i32 s{sKo}, s{sD}, {KR_STRIDE}")
    A.e(f"s_lshl_b32 s{sUo}, s{sD}, 12")
    UB = 4 * 4160
    for k in range(4):
        A.e(f"s_add_u32 m0, s{sBase}, {UB + 512 + 1024*k}")
        A.e(f"s_add_u32 s{sT0}, s{sUo}, {1024*k}")
        A.e(f"buffer_load_dwordx4 {v(vL16)}, {s(rU,4)}, s{sT0} offen lds")
    for sc in range(4):
        if sc: A.e(f"v_add_u32 {v(t[0])}, {2*sc}, {v(vL16)}")
        va = vL16 if sc == 0 else t[0]
        for k in range(4):
            A.e(f"s_add_u32 m0, s{sBase}, {sc*4160 + 1024*k}")
            A.e(f"s_add_u32 s{sT0}, s{sKo}, {1024*k}")
            A.e(f"buffer_load_dwordx4 {v(va)}, {s(rK,4)}, s{sT0} offen lds")
    vDs = V.alloc()
    A.e(f"s_lshl_b32 s{sT0}, s{sD}, 1")
    A.e(f"v_mov_b32 {v(t[1])}, s{sT0}")
    A.e(f"buffer_load_ushort {v(vDs)}, {v(t[1])}, {s(rD,4)}, 0 offen")
    A.e(f"v_mov_b32 {v(t[2])}, 0")
    A.e(f"v_mov_b32 {v(t[3])}, 0")
    A.e(f"v_lshlrev_b32 {v(t[4])}, 3, {v(vLane)}")
    A.e(f"v_add_u32 {v(t[4])}, s{sBase}, {v(t[4])}")
    A.e(f"ds_write_b64 {v(t[4])}, {v(t[2],2)} offset:{UB}")
    A.e(f"v_lshrrev_b32 {v(t[5])}, 3, {v(vLane)}")
    A.e(f"v_and_b32 {v(t[5])}, 3, {v(t[5])}")
    A.e(f"v_mul_u32_u24 {v(t[5])}, 4160, {v(t[5])}")
    A.e(f"v_and_b32 {v(t[6])}, 7, {v(vLane)}")
    A.e(f"v_lshlrev_b32 {v(t[6])}, 3, {v(t[6])}")
    A.e(f"v_add3_u32 {v(t[5])}, {v(t[5])}, {v(t[6])}, s{sBase}")
    A.e(f"ds_write_b64 {v(t[5])}, {v(t[2],2)} offset:4096")
    vN = V.alloc(); vG = V.alloc(); vAa = V.alloc(); vBa = V.alloc()
    A.e(f"v_and_b32 {v(vN)}, 15, {v(vLane)}")
    A.e(f"v_lshrrev_b32 {v(vG)}, 4, {v(vLane)}")
    A.e(f"v_sub_u32 {v(t[0])}, 3, {v(vN)}")
    A.e(f"v_and_b32 {v(t[0])}, 3, {v(t[0])}")
    A.e(f"v_lshlrev_b32 {v(t[1])}, 3, {v(vG)}")
    A.e(f"v_sub_u32 {v(t[1])}, {v(t[1])}, {v(vN)}")
    A.e(f"v_sub_u32 {v(t[1])}, {v(t[1])}, {v(t[0])}")
    A.e(f"v_add_u32 {v(t[1])}, {2031 - 32*63}, {v(t[1])}")
    A.e(f"v_lshlrev_b32 {v(t[1])}, 1, {v(t[1])}")
    A.e(f"v_mul_u32_u24 {v(t[0])}, 4160, {v(t[0])}")
    A.e(f"v_add3_u32 {v(vAa)}, {v(t[0])}, {v(t[1])}, s{sBase}")
    A.e(f"v_lshlrev_b32 {v(t[0])}, 5, {v(vN)}")
    A.e(f"v_lshlrev_b32 {v(t[1])}, 4, {v(vG)}")
    A.e(f"v_add3_u32 {v(vBa)}, {v(t[0])}, {v(t[1])}, s{sBase}")
    A.e(f"v_add_u32 {v(vBa)}, {UB + 32}, {v(vBa)}")
    vAcc = V.alloc(32, 4); vA = V.alloc(64, 4); vB = V.alloc(64, 4)
    def rdA(r, m):
        dl = r + 8*m; off = 64 * (63 - dl); reg = vA + (r % 2) * 32 + 4*m
        return [f"ds_read_b64 {v(reg,2)}, {v(vAa)} offset:{off}", f"ds_read_b64 {v(reg+2,2)}, {v(vAa)} offset:{off+8}"]
    def rdB(r, e):
        off = 512*e + 64*(7 - r); reg = vB + (r % 2) * 32 + 4*e
        return [f"ds_read_b128 {v(reg,4)}, {v(vBa)} offset:{off}"]
    def reads(r):
        L = []
        for k in range(8): L += rdB(r, k) + rdA(r, k)
        return L
    A.e("s_waitcnt vmcnt(0) lgkmcnt(0)")
    ST.mark()
    for x in reads(0): A.e(x)
    for r in range(8):
        A.e("s_waitcnt lgkmcnt(0)")
        fill = reads(r + 1) if r < 7 else []
        first = set()
        for m in range(8):
            for c_ in range(m, 8):
                cin = "0" if (r == 0 and m == 0) else v(vAcc + 4*c_, 4)
                A.e(f"v_mfma_f32_16x16x32_bf16 {v(vAcc+4*c_,4)}, {v(vA + (r%2)*32 + 4*m,4)}, {v(vB + (r%2)*32 + 4*(c_-m),4)}, {cin}")
                if fill: A.e(fill.pop(0))
        while fill: A.e(fill.pop(0))
    ST.mark()
    vUa = V.alloc(); vUv = vA; vSa = V.alloc()
    A.e(f"v_lshlrev_b32 {v(t[0])}, 5, {v(vN)}")
    A.e(f"v_lshlrev_b32 {v(t[1])}, 3, {v(vG)}")
    A.e(f"v_add_u32 {v(vSa)}, {v(t[0])}, {v(t[1])}")
    A.e(f"v_add_u32 {v(vUa)}, s{sBase}, {v(vSa)}")
    for c_ in range(8):
        A.e(f"ds_read_b64 {v(vUv+2*c_,2)}, {v(vUa)} offset:{UB + 512 + 512*c_}")
    A.e(f"v_lshlrev_b32 {v(vDs)}, 16, {v(vDs)}")
    A.e("s_nop 4")
    A.e("s_waitcnt lgkmcnt(0)")
    flags = " sc1" if handoff else ""
    for c_ in range(8):
        u0 = vUv + 2*c_
        a0 = vAcc + 4*c_
        A.e(f"v_lshlrev_b32 {v(t[0])}, 16, {v(u0)}")
        A.e(f"v_and_b32 {v(t[1])}, 0xffff0000, {v(u0)}")
        A.e(f"v_lshlrev_b32 {v(t[2])}, 16, {v(u0+1)}")
        A.e(f"v_and_b32 {v(t[3])}, 0xffff0000, {v(u0+1)}")
        for k in range(4):
            A.e(f"v_fma_f32 {v(a0+k)}, {v(t[k])}, {v(vDs)}, {v(a0+k)}")
        o = vB + 2*c_
        A.e(f"v_cvt_pk_bf16_f32 {v(o)}, {v(a0)}, {v(a0+1)}")
        A.e(f"v_cvt_pk_bf16_f32 {v(o+1)}, {v(a0+2)}, {v(a0+3)}")
        A.e(f"buffer_store_dwordx2 {v(o,2)}, {v(vSa)}, {s(rA,4)}, s{sUo} offen offset:{512*c_}{flags}")
    ST.mark()
    if handoff:
        rF = S.alloc(4, 4);
        raise NotImplementedError
    ST.flush(pWs, wg, T, sW, region=2)
    A.label(Lexit)
    return V.hi, S.hi
```

```python
from asmlib import *
LOG2E = 0x3fb8aa3b
INV2PI = 0x3e22f983

def cmul_pk(A, dst, w, x, add=None, conj_w=False):
    if add is None:
        A.e(f"v_pk_mul_f32 {v(dst,2)}, {v(w,2)}, {v(x,2)} op_sel:[0,0] op_sel_hi:[0,1]")
    else:
        A.e(f"v_pk_fma_f32 {v(dst,2)}, {v(w,2)}, {v(x,2)}, {v(add,2)} op_sel:[0,0,0] op_sel_hi:[0,1,1]")
    neg = "neg_hi:[1,0,0]" if conj_w else "neg_lo:[1,0,0]"
    A.e(f"v_pk_fma_f32 {v(dst,2)}, {v(w,2)}, {v(x,2)}, {v(dst,2)} op_sel:[1,1,0] op_sel_hi:[1,0,1] {neg}")

def csq(A, z, t0, t1):
    A.e(f"v_add_f32 {v(t0)}, {v(z)}, {v(z)}")
    A.e(f"v_mul_f32 {v(t1)}, {v(z+1)}, {v(z+1)}")
    A.e(f"v_mul_f32 {v(z+1)}, {v(t0)}, {v(z+1)}")
    A.e(f"v_fma_f32 {v(z)}, {v(z)}, {v(z)}, -{v(t1)}")

DPP_SWAP = "quad_perm:[1,0,3,2] row_mask:0xf bank_mask:0xf"

def gen_g1(A, wg="s2", stamps=False, window=None, NS=3, front=2, dbg_skip=""):
    S = RegAlloc(4, 100, "s"); V = RegAlloc(1, 256, "v")
    ST = Stamps(A, S, 9, stamps)
    ST.mark()
    pBre = S.alloc(4, 4); pBim = pBre + 2
    pLre = S.alloc(4, 4); pLim = pLre + 2
    pX = S.alloc(2, 2); pLdt = S.alloc(2, 2); pWs = S.alloc(2, 2); pDbg = S.alloc(2, 2)
    rX = S.alloc(4, 4); rB = S.alloc(4, 4); rP = S.alloc(4, 4); rH = S.alloc(4, 4); rS = S.alloc(4, 4); rF = S.alloc(4, 4)
    sW = S.alloc(); sC = S.alloc(); sJ = S.alloc(); sT0 = S.alloc(); sT1 = S.alloc(); sPart = S.alloc(); sWh = S.alloc()
    sXo = S.alloc(4); sBo = S.alloc(3); sLdsX = S.alloc(); sLdsB = S.alloc()
    sExec = S.alloc(2, 2)
    A.c("==== G1 ====")
    A.e(f"s_load_dwordx4 {s(pBre,4)}, s[0:1], {KA['Bre']}")
    A.e(f"s_load_dwordx4 {s(pLre,4)}, s[0:1], {KA['Lre']}")
    A.e(f"s_load_dwordx2 {s(pX,2)}, s[0:1], {KA['u']}")
    A.e(f"s_load_dwordx2 {s(pLdt,2)}, s[0:1], {KA['logdt_b']}")
    A.e(f"s_load_dwordx2 {s(pWs,2)}, s[0:1], {KA['ws']}")
    A.e(f"s_load_dwordx2 {s(pDbg,2)}, s[0:1], {KA['dbg']}")
    vLane = V.alloc(); vTmp = V.alloc(8, 2)
    t0, t1, t2, t3, t4, t5, t6, t7 = [vTmp + i for i in range(8)]
    A.e(f"v_lshrrev_b32 {v(t0)}, 6, v0")
    A.e(f"v_and_b32 {v(vLane)}, 63, v0")
    A.e(f"v_readfirstlane_b32 s{sW}, {v(t0)}")
    A.e(f"s_and_b32 s{sT0}, {wg}, 7")
    A.e(f"s_lshr_b32 s{sT1}, {wg}, 3")
    A.e(f"s_lshl_b32 s{sC}, s{sT0}, 1")
    A.e(f"s_and_b32 s{sT0}, s{sT1}, 1")
    A.e(f"s_add_u32 s{sC}, s{sC}, s{sT0}")
    A.e(f"s_lshr_b32 s{sJ}, s{sT1}, 1")
    A.e(f"s_and_b32 s{sPart}, s{sW}, 1")
    A.e(f"s_lshr_b32 s{sWh}, s{sW}, 1")
    vXoff = V.alloc(); vBoff = V.alloc()
    A.e(f"v_lshrrev_b32 {v(t0)}, 3, {v(vLane)}")
    A.e(f"v_and_b32 {v(t1)}, 7, {v(vLane)}")
    A.e(f"v_xor_b32 {v(t2)}, {v(t0)}, {v(t1)}")
    A.e(f"v_lshlrev_b32 {v(t2)}, 4, {v(t2)}")
    A.e(f"v_lshrrev_b32 {v(t3)}, 2, {v(t0)}")
    A.e(f"v_lshlrev_b32 {v(t3)}, 3, {v(t3)}")
    A.e(f"v_and_b32 {v(t4)}, 3, {v(t0)}")
    A.e(f"v_add_u32 {v(t3)}, {v(t3)}, {v(t4)}")
    A.e(f"v_mul_u32_u24 {v(vXoff)}, 1280, {v(t3)}")
    A.e(f"v_add_u32 {v(vXoff)}, {v(vXoff)}, {v(t2)}")
    A.e(f"v_and_b32 {v(t3)}, 6, {v(t0)}")
    A.e(f"v_or_b32 {v(t3)}, s{sPart}, {v(t3)}")
    A.e(f"v_xor_b32 {v(t3)}, {v(t3)}, {v(t1)}")
    A.e(f"v_lshlrev_b32 {v(t3)}, 4, {v(t3)}")
    A.e(f"v_mul_u32_u24 {v(vBoff)}, 1280, {v(t0)}")
    A.e(f"v_add_u32 {v(vBoff)}, {v(vBoff)}, {v(t3)}")
    vN = V.alloc(); vG = V.alloc()
    A.e(f"v_and_b32 {v(vN)}, 15, {v(vLane)}")
    A.e(f"v_lshrrev_b32 {v(vG)}, 4, {v(vLane)}")
    vAa = V.alloc(6); vBa = V.alloc(6)
    RING0 = 2048; SLOT = 26624; HI = RING0 + 2 * SLOT; HI2 = RING0 + 4 * SLOT
    A.e(f"v_and_b32 {v(t0)}, 7, {v(vN)}")
    A.e(f"v_xor_b32 {v(t0)}, {v(t0)}, {v(vG)}")
    A.e(f"v_lshlrev_b32 {v(t0)}, 4, {v(t0)}")
    A.e(f"v_lshlrev_b32 {v(t1)}, 7, {v(vN)}")
    A.e(f"v_add_u32 {v(t0)}, {v(t0)}, {v(t1)}")
    A.e(f"s_lshl_b32 s{sT0}, s{sW}, 12")
    A.e(f"v_add_u32 {v(vAa)}, s{sT0}, {v(t0)}")
    A.e(f"v_xor_b32 {v(vAa+1)}, 64, {v(vAa)}")
    A.e(f"v_add_u32 {v(vAa+2)}, {HI}, {v(vAa)}")
    A.e(f"v_add_u32 {v(vAa+3)}, {HI}, {v(vAa+1)}")
    A.e(f"v_add_u32 {v(vAa+4)}, {HI2}, {v(vAa)}")
    A.e(f"v_add_u32 {v(vAa+5)}, {HI2}, {v(vAa+1)}")
    A.e(f"v_and_b32 {v(t0)}, 1, {v(vN)}")
    A.e(f"v_lshrrev_b32 {v(t1)}, 1, {v(vN)}")
    A.e(f"v_lshlrev_b32 {v(t2)}, 3, {v(t0)}")
    A.e(f"v_add_u32 {v(t2)}, {v(t2)}, {v(t1)}")
    A.e(f"v_and_b32 {v(t3)}, 6, {v(t1)}")
    A.e(f"v_or_b32 {v(t3)}, {v(t3)}, {v(t0)}")
    A.e(f"v_xor_b32 {v(t3)}, {v(t3)}, {v(vG)}")
    A.e(f"v_lshlrev_b32 {v(t3)}, 4, {v(t3)}")
    A.e(f"v_lshlrev_b32 {v(t2)}, 7, {v(t2)}")
    A.e(f"v_add_u32 {v(t2)}, {v(t2)}, {v(t3)}")
    A.e(f"v_add_u32 {v(vBa)}, 16384, {v(t2)}")
    A.e(f"v_xor_b32 {v(vBa+1)}, 64, {v(vBa)}")
    A.e(f"v_add_u32 {v(vBa+2)}, {HI}, {v(vBa)}")
    A.e(f"v_add_u32 {v(vBa+3)}, {HI}, {v(vBa+1)}")
    A.e(f"v_add_u32 {v(vBa+4)}, {HI2}, {v(vBa)}")
    A.e(f"v_add_u32 {v(vBa+5)}, {HI2}, {v(vBa+1)}")
    vPo = V.alloc()
    A.e(f"s_mul_i32 s{sT0}, s{sJ}, 80")
    A.e(f"v_and_b32 {v(vPo)}, 14, {v(vN)}")
    A.e(f"v_add_u32 {v(vPo)}, s{sT0}, {v(vPo)}")
    A.e("s_waitcnt lgkmcnt(0)")
    ST.mark()
    srd(A, rX, pX, 2048 * 1280)
    A.e(f"s_cmp_eq_u32 s{sPart}, 0")
    A.e(f"s_cselect_b32 s{rB}, s{pBre}, s{pBim}")
    A.e(f"s_cselect_b32 s{rB+1}, s{pBre+1}, s{pBim+1}")
    A.e(f"s_and_b32 s{rB+1}, s{rB+1}, 0xffff")
    A.e(f"s_mov_b32 s{rB+2}, {640*1280}")
    A.e(f"s_mov_b32 s{rB+3}, 0x{SRD3:08x}")
    A.e(f"s_lshl_b32 s{sT0}, s{sC}, 7")
    A.e(f"s_lshl_b32 s{sT1}, s{sW}, 5")
    A.e(f"s_add_u32 s{sT0}, s{sT0}, s{sT1}")
    A.e(f"s_mul_i32 s{sXo}, s{sT0}, 1280")
    A.e(f"s_add_u32 s{sXo+1}, s{sXo}, {16*1280}")
    A.e(f"s_add_u32 s{sXo+2}, s{sXo}, {4*1280}")
    A.e(f"s_add_u32 s{sXo+3}, s{sXo}, {20*1280}")
    A.e(f"s_lshl_b32 s{sLdsX}, s{sW}, 12")
    A.e(f"s_mul_i32 s{sT0}, s{sJ}, 40")
    A.e(f"s_lshl_b32 s{sT1}, s{sWh}, 3")
    A.e(f"s_add_u32 s{sT0}, s{sT0}, s{sT1}")
    A.e(f"s_mul_i32 s{sBo}, s{sT0}, 1280")
    A.e(f"s_add_u32 s{sBo+1}, s{sBo}, {16*1280}")
    A.e(f"s_add_u32 s{sBo+2}, s{sBo}, {32*1280}")
    A.e(f"s_lshl_b32 s{sLdsB}, s{sWh}, 11")
    A.e(f"s_lshl_b32 s{sT1}, s{sPart}, 10")
    A.e(f"s_add_u32 s{sLdsB}, s{sLdsB}, s{sT1}")
    A.e(f"s_add_u32 s{sLdsB}, s{sLdsB}, 16384")
    sNonce = S.alloc(); rGen = S.alloc(4, 4); vGen = V.alloc()
    srd_off(A, rGen, pWs, WS_GEN, 256)
    srd(A, rF, pDbg, 256)
    Lg = A.newlabel("g1gen")
    A.e(f"s_or_b32 s{sT0}, {wg}, s{sW}")
    A.e(f"s_cmp_lg_u32 s{sT0}, 0")
    A.e(f"s_cbranch_scc1 {Lg}")
    A.e(f"v_mov_b32 {v(t7)}, 0")
    A.e(f"buffer_load_dword {v(vGen)}, {v(t7)}, {s(rGen,4)}, 0 offen sc1")
    A.label(Lg)
    def nonce_publish():
        L = A.newlabel("g1nonce")
        A.e(f"s_or_b32 s{sT0}, {wg}, s{sW}")
        A.e(f"s_cmp_lg_u32 s{sT0}, 0")
        A.e(f"s_cbranch_scc1 {L}")
        A.e(f"v_add_u32 {v(vGen)}, 1, {v(vGen)}")
        A.e(f"v_max_u32 {v(vGen)}, 1, {v(vGen)}")
        A.e(f"v_mov_b32 {v(t7)}, 0")
        A.e(f"v_cmp_eq_u32 {s(sExec,2)}, 0, {v(vLane)}")
        A.e("s_nop 4")
        A.e(f"s_mov_b64 exec, {s(sExec,2)}")
        A.e(f"buffer_store_dword {v(vGen)}, {v(t7)}, {s(rGen,4)}, 0 offen sc1")
        A.e(f"buffer_store_dword {v(vGen)}, {v(t7)}, {s(rF,4)}, 0 offen sc1")
        A.e("s_mov_b64 exec, -1")
        A.e("s_waitcnt vmcnt(0)")
        A.label(L)
    vPar = V.alloc(16, 2)
    for k, p in enumerate((pLre, pLim, pLdt)):
        srd(A, rP, p, 1280)
        for ct in range(5):
            A.e(f"buffer_load_ushort {v(vPar + 5*k + ct)}, {v(vPo)}, {s(rP,4)}, 0 offen offset:{16*ct}")
        if k < 2: A.e("s_nop 0")
    NST = 10; PD = NS - 1
    vAcc = V.alloc(40, 4); vFr = V.alloc(56, 4)
    def acc(rt, ct): return vAcc + (ct * 2 + rt) * 4
    free0 = RING0 + (SLOT if (9 % NS) == 0 else 0)
    if (9 % NS) == 1: free0 = RING0 + 2 * SLOT if NS > 2 else None
    if NS >= 4 and (9 % NS) >= 2: free0 = RING0
    E_OFF = free0; CIN_OFF = E_OFF + 5120; T_OFF = CIN_OFF + 5120; LAM_OFF = 0; COEF_OFF = LAM_OFF + 320
    assert T_OFF + 23040 < 65536
    vLr = V.alloc(5); vSli = V.alloc(5); vAl = V.alloc(5); vBe = V.alloc(5)

    def dma_x(st, i):
        A.e(f"s_add_u32 m0, s{sLdsX}, {RING0 + (st % NS) * SLOT + i * 1024}")
        A.e("s_nop 0")
        A.e(f"buffer_load_dwordx4 {v(vXoff)}, {s(rX,4)}, s{sXo+i} offen lds")
    def dma_b(st, i):
        A.e(f"s_add_u32 m0, s{sLdsB}, {RING0 + (st % NS) * SLOT + i * 4096}")
        A.e("s_nop 0")
        A.e(f"buffer_load_dwordx4 {v(vBoff)}, {s(rB,4)}, s{sBo+i} offen lds")
    def adv():
        A.e(f"v_add_u32 {v(vXoff)}, 128, {v(vXoff)}")
        A.e(f"v_add_u32 {v(vBoff)}, 128, {v(vBoff)}")

    def consts():
        A.c("per-lane scan constants")
        for ct in range(5):
            lre, lim, ldt = vPar + ct, vPar + 5 + ct, vPar + 10 + ct
            A.e(f"v_lshlrev_b32 {v(lre)}, 16, {v(lre)}")
            A.e(f"v_lshlrev_b32 {v(lim)}, 16, {v(lim)}")
            A.e(f"v_lshlrev_b32 {v(ldt)}, 16, {v(ldt)}")
            A.e(f"v_mul_f32 {v(t0)}, 0x{LOG2E:08x}, {v(ldt)}")
            A.e(f"v_exp_f32 {v(t0)}, {v(t0)}")
            A.e("s_nop 0")
            A.e(f"v_cvt_pk_bf16_f32 {v(t0)}, {v(t0)}, {v(t0)}")
            A.e(f"v_lshlrev_b32 {v(t0)}, 16, {v(t0)}")
            A.e(f"v_mul_f32 {v(t1)}, {v(t0)}, {v(lre)}")
            A.e(f"v_mul_f32 {v(t2)}, {v(t0)}, {v(lim)}")
            A.e(f"v_mul_f32 {v(t1)}, 0x{LOG2E:08x}, {v(t1)}")
            A.e(f"v_mul_f32 {v(t2)}, 0x{INV2PI:08x}, {v(t2)}")
            A.e(f"v_exp_f32 {v(t1)}, {v(t1)}")
            A.e(f"v_fract_f32 {v(t2)}, {v(t2)}")
            A.e(f"v_cos_f32 {v(t3)}, {v(t2)}")
            A.e(f"v_sin_f32 {v(t4)}, {v(t2)}")
            A.e("s_nop 0")
            A.e(f"v_mul_f32 {v(vLr+ct)}, {v(t1)}, {v(t3)}")
            A.e(f"v_mul_f32 {v(t4)}, {v(t1)}, {v(t4)}")
            A.e(f"v_add_f32 {v(t3)}, -1.0, {v(vLr+ct)}")
            A.e(f"v_mul_f32 {v(t5)}, {v(lre)}, {v(lre)}")
            A.e(f"v_fma_f32 {v(t5)}, {v(lim)}, {v(lim)}, {v(t5)}")
            A.e(f"v_rcp_f32 {v(t5)}, {v(t5)}")
            A.e(f"v_mul_f32 {v(t6)}, {v(t3)}, {v(lre)}")
            A.e(f"v_fma_f32 {v(t6)}, {v(t4)}, {v(lim)}, {v(t6)}")
            A.e(f"v_mul_f32 {v(t7)}, {v(t4)}, {v(lre)}")
            A.e(f"v_fma_f32 {v(t7)}, -{v(t3)}, {v(lim)}, {v(t7)}")
            A.e(f"v_mul_f32 {v(t6)}, {v(t6)}, {v(t5)}")
            A.e(f"v_mul_f32 {v(t7)}, {v(t7)}, {v(t5)}")
            A.e(f"v_sub_f32 {v(t5)}, 0, {v(t4)}")
            A.e(f"v_cndmask_b32 {v(vSli+ct)}, {v(t5)}, {v(t4)}, vcc")
            A.e(f"v_add_f32 {v(t1)}, {v(t6)}, {v(t6)}")
            A.e(f"v_sub_f32 {v(t2)}, 0, {v(t1)}")
            A.e(f"v_cndmask_b32 {v(vAl+ct)}, {v(t1)}, {v(t2)}, vcc")
            A.e(f"v_mul_f32 {v(vBe+ct)}, -2.0, {v(t7)}")
            A.e(f"v_cndmask_b32 {v(t1)}, {v(vLr+ct)}, {v(t4)}, vcc")
            A.e(f"v_cndmask_b32 {v(t2)}, {v(t6)}, {v(t7)}, vcc")
            A.e(f"ds_write_b32 {v(vN4)}, {v(t1)} offset:{LAM_OFF + 64*ct}")
            A.e(f"ds_write_b32 {v(vN4)}, {v(t2)} offset:{COEF_OFF + 64*ct}")
    vN4 = V.alloc()
    A.e(f"v_lshlrev_b32 {v(vN4)}, 2, {v(vN)}")

    Lvar1 = A.newlabel("g1var1"); Lloopend = A.newlabel("g1loopend")
    A.e(f"s_cmp_eq_u32 s{sWh}, 0")
    A.e(f"s_cbranch_scc0 {Lvar1}")
    for var in range(2):
        if var == 1: A.label(Lvar1)
        nB = 3 if var == 0 else 2
        nD = 4 + nB
        def stage_list(st): return [("x", st, i) for i in range(4)] + [("b", st, i) for i in range(nB)] + [("adv",)]
        issued = []
        def emit(p):
            if p[0] == "adv": adv(); return
            (dma_x if p[0] == "x" else dma_b)(p[1], p[2]); issued.append(p[1])
        def wait_stage(st):
            n = sum(1 for q in issued if q > st)
            A.e(f"s_waitcnt vmcnt({n})")
        def reads(st, kb):
            slot = st % NS
            base = RING0 + slot * SLOT if slot < 2 else (slot % 2) * SLOT
            ar = 2 * (slot // 2)
            L = []
            for rt in range(2):
                L.append(f"ds_read_b128 {v(vFr + (kb*7 + rt)*4, 4)}, {v(vAa + ar + kb)} offset:{base + rt*2048}")
            for ct in range(5):
                L.append(f"ds_read_b128 {v(vFr + (kb*7 + 2 + ct)*4, 4)}, {v(vBa + ar + kb)} offset:{base + ct*2048}")
            return L
        def mfmas(st, kb, fill):
            k = 0
            for ct in range(5):
                for rt in range(2):
                    cin = "0" if (st == 0 and kb == 0) else v(acc(rt, ct), 4)
                    A.e(f"v_mfma_f32_16x16x32_bf16 {v(acc(rt,ct),4)}, {v(vFr + (kb*7+rt)*4,4)}, {v(vFr + (kb*7+2+ct)*4,4)}, {cin}")
                    if fill:
                        f = fill.pop(0)
                        f()
            while fill: fill.pop(0)()
        for st in range(min(2, NS)):
            for p in stage_list(st): emit(p)
        A.e(f"s_waitcnt vmcnt({len(issued)})")
        A.e(f"v_and_b32 {v(t0)}, 1, {v(vN)}")
        A.e(f"v_cmp_eq_u32 vcc, 1, {v(t0)}")
        A.e("s_nop 1")
        consts()
        if var == 0:
            nonce_publish()
        for st in range(2, NS):
            for p in stage_list(st): emit(p)
        ST.mark() if var == 0 else None
        wait_stage(0)
        A.e("s_barrier")
        for r in reads(0, 0): A.e(r)
        for st in range(NST):
            A.e("s_waitcnt lgkmcnt(0)")
            rd = reads(st, 1)
            mfmas(st, 0, [(lambda r=r: A.e(r)) for r in rd])
            if st + 1 < NST: wait_stage(st + 1)
            A.e("s_waitcnt lgkmcnt(0)")
            if st + 1 < NST: A.e("s_barrier")
            fill = []
            if st + 1 < NST:
                fill += [(lambda r=r: A.e(r)) for r in reads(st + 1, 0)]
            if st + NS < NST:
                fill += [(lambda p=p: emit(p)) for p in stage_list(st + NS)]
            nrd = 7 if st + 1 < NST else 0
            for _ in range(min(3, nrd)): fill.pop(0)()
            mfmas(st, 1, fill)
        if var == 0: A.e(f"s_branch {Lloopend}")
    A.label(Lloopend)
    ST.mark()
    A.c("pass 1: per-lane 8-step end state")
    A.e("s_nop 7")
    vE = V.alloc(10)
    b = lambda ct, e: vAcc + ct * 8 + e
    cur = [b(ct, 0) for ct in range(5)]
    for e in range(1, 8):
        nxt = [vE + 5 * (e % 2) + ct for ct in range(5)]
        for ct in range(5):
            A.e(f"v_fma_f32 {v(nxt[ct])}, {v(vLr+ct)}, {v(cur[ct])}, {v(b(ct,e))}")
        for ct in range(5):
            A.e(f"v_fmac_f32_dpp {v(nxt[ct])}, {v(cur[ct])}, {v(vSli+ct)} {DPP_SWAP}")
        cur = nxt
    vEa = V.alloc()
    A.e(f"s_lshl_b32 s{sT0}, s{sW}, 2")
    A.e(f"v_add_u32 {v(vEa)}, s{sT0}, {v(vG)}")
    A.e(f"v_mul_u32_u24 {v(vEa)}, 320, {v(vEa)}")
    A.e(f"v_add_u32 {v(vEa)}, {v(vEa)}, {v(vN4)}")
    for ct in range(5):
        A.e(f"ds_write_b32 {v(vEa)}, {v(cur[ct])} offset:{E_OFF + 64*ct}")
    A.e("s_waitcnt lgkmcnt(0)")
    A.e("s_barrier")
    vZ = V.alloc(40, 2)
    m = V.mark()
    vES = vFr; vL8 = vFr + 32; vL128 = vFr + 34; vCo = vFr + 36; vP = vFr + 38; vGr = vFr + 44
    vL8a = V.alloc(); vL16a = V.alloc(); vSS2 = V.alloc(20, 4)
    def SS(k): return vAcc + 4 * k if k < 10 else vSS2 + 4 * (k - 10)
    LnotW0a = A.newlabel("g1nw0a"); Lnp = A.newlabel("g1np"); Lnok = A.newlabel("g1nok")
    sCnt = pLre; sM = pBre; sAll = pBre + 2
    A.e(f"s_cmp_lg_u32 s{sW}, 0")
    A.e(f"s_cbranch_scc1 {LnotW0a}")
    A.e(f"v_mov_b32 {v(t2)}, 0")
    A.e(f"buffer_load_dword {v(t3)}, {v(t2)}, {s(rF,4)}, 0 offen sc1")
    A.e(f"v_lshlrev_b32 {v(vL8a)}, 3, {v(vLane)}")
    A.e(f"v_lshlrev_b32 {v(vL16a)}, 4, {v(vLane)}")
    A.e(f"ds_read_b64 {v(vL8,2)}, {v(vL8a)} offset:{LAM_OFF}")
    A.e(f"ds_read_b64 {v(vCo,2)}, {v(vL8a)} offset:{COEF_OFF}")
    for sg in range(16):
        A.e(f"ds_read_b64 {v(vES+2*sg,2)}, {v(vL8a)} offset:{E_OFF + 320*sg}")
    A.e("s_waitcnt lgkmcnt(15)")
    for _ in range(3): csq(A, vL8, t0, t1)
    A.e(f"v_mov_b32 {v(vL128)}, {v(vL8)}")
    A.e(f"v_mov_b32 {v(vL128+1)}, {v(vL8+1)}")
    A.e("s_waitcnt lgkmcnt(0)")
    P = [vP, vP + 2]
    src = vES
    for sg in range(1, 16):
        dst = vGr if sg == 15 else P[sg % 2]
        cmul_pk(A, dst, vL8, src, add=vES + 2 * sg)
        src = dst
    srd_off(A, rS, pWs, WS_S, WS_S_SZ)
    A.e(f"s_lshl_b32 s{sT0}, s{sJ}, 4")
    A.e(f"s_add_u32 s{sT0}, s{sT0}, s{sC}")
    A.e(f"s_mul_i32 s{sT0}, s{sT0}, 640")
    A.e(f"s_mov_b32 s{sCnt}, 0")
    A.label(Lnp)
    A.e("s_waitcnt vmcnt(0)")
    A.e(f"v_readfirstlane_b32 s{sNonce}, {v(t3)}")
    A.e("s_nop 3")
    A.e(f"s_cmp_lg_u32 s{sNonce}, 0")
    A.e(f"s_cbranch_scc1 {Lnok}")
    A.e("s_sleep 1")
    A.e(f"buffer_load_dword {v(t3)}, {v(t2)}, {s(rF,4)}, 0 offen sc1")
    A.e(f"s_add_u32 s{sCnt}, s{sCnt}, 1")
    A.e(f"s_cmp_lt_u32 s{sCnt}, 200000")
    A.e(f"s_cbranch_scc1 {Lnp}")
    A.label(Lnok)
    A.e(f"v_mov_b32 {v(vGr+2)}, s{sNonce}")
    A.e(f"v_mov_b32 {v(vGr+3)}, s{sNonce}")
    A.e(f"v_cmp_gt_u32 vcc, 40, {v(vLane)}")
    A.e(f"s_and_saveexec_b64 {s(sExec,2)}, vcc")
    A.e(f"buffer_store_dwordx4 {v(vGr,4)}, {v(vL16a)}, {s(rS,4)}, s{sT0} offen sc1")
    A.e(f"s_mov_b64 exec, {s(sExec,2)}")
    for _ in range(4): csq(A, vL128, t0, t1)
    A.e(f"v_add_f32 {v(t4)}, {v(vCo)}, {v(vCo)}")
    A.e(f"v_sub_f32 {v(t5)}, 0, {v(t4)}")
    A.e(f"v_mul_f32 {v(t6)}, -2.0, {v(vCo+1)}")
    A.e(f"v_mov_b32 {v(t7)}, {v(t6)}")
    assert t4 % 2 == 0
    for sg in range(16):
        A.e(f"v_pk_mul_f32 {v(P[0],2)}, {v(t4,2)}, {v(vES+2*sg,2)}")
        A.e(f"v_pk_fma_f32 {v(vES+2*sg,2)}, {v(t6,2)}, {v(vES+2*sg,2)}, {v(P[0],2)} op_sel:[0,1,0] op_sel_hi:[1,0,1]")
    A.label(LnotW0a)
    ST.mark()
    for ct in range(5):
        for e in range(8):
            A.e(f"v_mul_f32 {v(vZ + ct*8 + e)}, {v(vAl+ct)}, {v(b(ct,e))}")
        for e in range(8):
            A.e(f"v_fmac_f32_dpp {v(vZ + ct*8 + e)}, {v(b(ct,e))}, {v(vBe+ct)} {DPP_SWAP}")
    for ct in range(5):
        A.e(f"v_sub_f32 {v(vSli+ct)}, 0, {v(vSli+ct)}")
    vTw = V.alloc(); vTa = V.alloc(); vTb = V.alloc(); vHi = V.alloc(); vPt = V.alloc(); vHa = V.alloc(5)
    w0, w1, w2, w3 = t0, t1, t2, t3
    A.e(f"v_mul_u32_u24 {v(vTw)}, 288, {v(vN)}")
    A.e(f"s_lshl_b32 s{sT0}, s{sW}, 6")
    A.e(f"v_lshlrev_b32 {v(w0)}, 4, {v(vG)}")
    A.e(f"v_add3_u32 {v(vTw)}, {v(vTw)}, {v(w0)}, s{sT0}")
    A.e(f"v_lshrrev_b32 {v(w0)}, 2, {v(vN)}")
    A.e(f"v_and_b32 {v(w1)}, 3, {v(vN)}")
    A.e(f"v_and_b32 {v(vPt)}, 1, {v(vG)}")
    A.e(f"v_lshrrev_b32 {v(vHi)}, 1, {v(vG)}")
    A.e(f"v_lshlrev_b32 {v(w0)}, 1, {v(w0)}")
    A.e(f"v_add_u32 {v(w0)}, {v(w0)}, {v(vPt)}")
    A.e(f"v_mul_u32_u24 {v(w0)}, 288, {v(w0)}")
    A.e(f"v_lshlrev_b32 {v(w1)}, 3, {v(w1)}")
    A.e(f"v_add3_u32 {v(w0)}, {v(w0)}, {v(w1)}, s{sT0}")
    A.e(f"v_mul_u32_u24 {v(w1)}, 4608, {v(vHi)}")
    A.e(f"v_add_u32 {v(vTa)}, {v(w0)}, {v(w1)}")
    A.e(f"v_lshlrev_b32 {v(w1)}, 5, {v(vHi)}")
    A.e(f"v_add_u32 {v(vTb)}, {v(w0)}, {v(w1)}")
    groups = [((0,0),(1,0), vTa, 0), ((2,0),(3,0), vTa, 2*4608), ((4,0),(4,1), vTb, 4*4608), ((0,1),(1,1), vTa, 32), ((2,1),(3,1), vTa, 2*4608+32)]
    srd_off(A, rH, pWs, WS_H, WS_H_SZ)
    A.e(f"s_lshl_b32 s{sT0}, s{sC}, 3")
    A.e(f"s_lshl_b32 s{sT1}, s{sW}, 1")
    A.e(f"s_add_u32 s{sT0}, s{sT0}, s{sT1}")
    A.e(f"s_mul_i32 s{sT0}, s{sT0}, {40*1024}")
    A.e(f"s_mul_i32 s{sT1}, s{sJ}, 5")
    A.e(f"v_lshlrev_b32 {v(w2)}, 9, {v(vPt)}")
    A.e(f"v_lshlrev_b32 {v(w3)}, 4, {v(vN)}")
    A.e(f"v_add3_u32 {v(w2)}, {v(w2)}, {v(w3)}, s{sT0}")
    for k, (ca, cb, va, off) in enumerate(groups):
        dct = cb[0] - ca[0]; dta = cb[1] - ca[1]
        if dct:
            A.e(f"v_add_u32 {v(w0)}, {ca[0]}, {v(vHi)}")
        else:
            A.e(f"v_mov_b32 {v(w0)}, {ca[0]}")
        A.e(f"v_add_u32 {v(w0)}, s{sT1}, {v(w0)}")
        A.e(f"v_lshrrev_b32 {v(w1)}, 1, {v(w0)}")
        A.e(f"v_lshlrev_b32 {v(w1)}, 10, {v(w1)}")
        A.e(f"v_and_b32 {v(w0)}, 1, {v(w0)}")
        A.e(f"v_lshlrev_b32 {v(w0)}, 8, {v(w0)}")
        A.e(f"v_add3_u32 {v(vHa+k)}, {v(w0)}, {v(w1)}, {v(w2)}")
        if dta:
            A.e(f"v_mul_u32_u24 {v(w0)}, 40960, {v(vHi)}")
            A.e(f"v_add_u32 {v(vHa+k)}, {v(vHa+k)}, {v(w0)}")
        elif ca[1] == 1:
            A.e(f"v_add_u32 {v(vHa+k)}, 40960, {v(vHa+k)}")
    if window is not None:
        window(A, S, V, dict(sW=sW, vLane=vLane, wg=wg, pWs=pWs, vTmp=vTmp))
    ST.mark()
    LnotW0b = A.newlabel("g1nw0b"); Lpoll = A.newlabel("g1poll"); Lgot = A.newlabel("g1got"); Lnoload = A.newlabel("g1noload"); Lhorn = A.newlabel("g1horn")
    A.e(f"s_cmp_lg_u32 s{sW}, 0")
    A.e(f"s_cbranch_scc1 {LnotW0b}")
    A.e(f"v_mov_b32 {v(P[0])}, 0")
    A.e(f"v_mov_b32 {v(P[0]+1)}, 0")
    A.e(f"s_cmp_eq_u32 s{sC}, 0")
    A.e(f"s_cbranch_scc1 {Lhorn}")
    A.e(f"s_mul_i32 s{sT0}, s{sJ}, {16*640}")
    A.e(f"s_mov_b32 s{sCnt}, 0")
    A.e(f"v_min_u32 {v(t2)}, 39, {v(vLane)}")
    A.e(f"v_lshlrev_b32 {v(t2)}, 4, {v(t2)}")
    A.label(Lpoll)
    for k in range(15):
        A.e(f"s_cmp_gt_u32 s{sC}, {k}")
        A.e(f"s_cbranch_scc0 {Lnoload}")
        if 640*k < 4096:
            A.e(f"buffer_load_dwordx4 {v(SS(k),4)}, {v(t2)}, {s(rS,4)}, s{sT0} offen offset:{640*k} sc1")
        else:
            A.e(f"s_add_u32 s{sT1}, s{sT0}, {640*k}")
            A.e(f"buffer_load_dwordx4 {v(SS(k),4)}, {v(t2)}, {s(rS,4)}, s{sT1} offen sc1")
    A.label(Lnoload)
    A.e("s_waitcnt vmcnt(0)")
    A.e(f"s_mov_b64 {s(sAll,2)}, -1")
    Lchk = A.newlabel("g1chk")
    for k in range(15):
        A.e(f"s_cmp_gt_u32 s{sC}, {k}")
        A.e(f"s_cbranch_scc0 {Lchk}")
        A.e(f"v_cmp_eq_u32 vcc, s{sNonce}, {v(SS(k)+2)}")
        A.e(f"v_cmp_eq_u32 {s(sM,2)}, s{sNonce}, {v(SS(k)+3)}")
        A.e("s_nop 4")
        A.e(f"s_and_b64 {s(sAll,2)}, {s(sAll,2)}, vcc")
        A.e(f"s_and_b64 {s(sAll,2)}, {s(sAll,2)}, {s(sM,2)}")
    A.label(Lchk)
    A.e(f"s_cmp_eq_u64 {s(sAll,2)}, -1")
    A.e(f"s_cbranch_scc1 {Lgot}")
    A.e("s_sleep 1")
    A.e(f"s_add_u32 s{sCnt}, s{sCnt}, 1")
    A.e(f"s_cmp_lt_u32 s{sCnt}, 100000")
    A.e(f"s_cbranch_scc1 {Lpoll}")
    A.label(Lgot)
    Hs = [P[0], P[1]]
    Lhd = [A.newlabel("g1hd0"), A.newlabel("g1hd1")]
    for k in range(15):
        A.e(f"s_cmp_gt_u32 s{sC}, {k}")
        A.e(f"s_cbranch_scc0 {Lhd[k % 2]}")
        cmul_pk(A, Hs[(k + 1) % 2], vL128, Hs[k % 2], add=SS(k))
    A.e(f"s_branch {Lhd[15 % 2]}")
    A.label(Lhd[1])
    A.e(f"v_mov_b32 {v(P[0])}, {v(P[1])}")
    A.e(f"v_mov_b32 {v(P[0]+1)}, {v(P[1]+1)}")
    A.label(Lhd[0])
    A.label(Lhorn)
    A.e(f"v_pk_mul_f32 {v(P[1],2)}, {v(t4,2)}, {v(P[0],2)}")
    A.e(f"v_pk_fma_f32 {v(P[0],2)}, {v(t6,2)}, {v(P[0],2)}, {v(P[1],2)} op_sel:[0,1,0] op_sel_hi:[1,0,1]")
    src = P[0]
    for sg in range(16):
        A.e(f"ds_write_b64 {v(vL8a)}, {v(src,2)} offset:{CIN_OFF + 320*sg}")
        if sg < 15:
            dst = P[(sg + 1) % 2]
            cmul_pk(A, dst, vL8, src, add=vES + 2 * sg, conj_w=True)
            src = dst
    A.e("s_waitcnt lgkmcnt(0)")
    A.label(LnotW0b)
    A.e("s_barrier")
    ST.mark()
    vC5 = vE
    for ct in range(5):
        A.e(f"ds_read_b32 {v(vC5+ct)}, {v(vEa)} offset:{CIN_OFF + 64*ct}")
    A.e("s_waitcnt lgkmcnt(0)")
    z = lambda ct, e: vZ + ct * 8 + e
    cur = [vC5 + ct for ct in range(5)]
    for e in range(8):
        for ct in range(5):
            A.e(f"v_fma_f32 {v(z(ct,e))}, {v(vLr+ct)}, {v(cur[ct])}, {v(z(ct,e))}")
        if e == 0: A.e("s_nop 0")
        for ct in range(5):
            A.e(f"v_fmac_f32_dpp {v(z(ct,e))}, {v(cur[ct])}, {v(vSli+ct)} {DPP_SWAP}")
        cur = [z(ct, e) for ct in range(5)]
    vPk = vFr
    for ct in range(5):
        for k in range(4):
            A.e(f"v_cvt_pk_bf16_f32 {v(vPk + ct*4 + k)}, {v(z(ct,2*k))}, {v(z(ct,2*k+1))}")
        A.e(f"ds_write_b128 {v(vTw)}, {v(vPk + ct*4, 4)} offset:{T_OFF + ct*16*288}")
    vOutF = vFr + 20
    A.e("s_waitcnt lgkmcnt(0)")
    for k, (ca, cb, va, off) in enumerate(groups):
        A.e(f"ds_read_b64_tr_b16 {v(vOutF + 4*k, 2)}, {v(va)} offset:{T_OFF + off}")
        A.e(f"ds_read_b64_tr_b16 {v(vOutF + 4*k + 2, 2)}, {v(va)} offset:{T_OFF + off + 2304}")
    for k in range(5):
        A.e(f"s_waitcnt lgkmcnt({2*(4-k)})")
        A.e(f"buffer_store_dwordx4 {v(vOutF + 4*k, 4)}, {v(vHa+k)}, {s(rH,4)}, 0 offen")
    ST.mark()
    A.e("s_waitcnt vmcnt(0)")
    ST.mark()
    ST.flush(pWs, wg, vTmp, sW, region=0)
    return V.hi, S.hi
```

```python
from asmlib import *

def gen_g2(A, wg="s2", handoff=False, stamps=False):
    S = RegAlloc(4, 100, "s"); V = RegAlloc(1, 256, "v")
    ST = Stamps(A, S, 6, stamps)
    ST.mark()
    pCre = S.alloc(2, 2); pCim = S.alloc(2, 2); pX = S.alloc(2, 2); pDs = S.alloc(2, 2); pOut = S.alloc(2, 2); pWs = S.alloc(2, 2)
    rC = S.alloc(4, 4); rH = S.alloc(4, 4); rX = S.alloc(4, 4); rDs = S.alloc(4, 4); rOut = S.alloc(4, 4); rAT = S.alloc(4, 4); rG = S.alloc(4, 4)
    sW = S.alloc(); sTh = S.alloc(); sKh = S.alloc(); sRt = S.alloc(); sDt = S.alloc(); sT0 = S.alloc(); sT1 = S.alloc()
    sCoff = S.alloc(5); sLdsW = S.alloc(); sH0 = S.alloc(); sH1 = S.alloc()
    A.c("==== G2 ====")
    A.e(f"s_load_dwordx4 s[{pCre}:{pCre+3}], s[0:1], {KA['Cre']}")
    assert pCim == pCre + 2 and pCre % 4 == 0
    A.e(f"s_load_dwordx2 {s(pX,2)}, s[0:1], {KA['u']}")
    A.e(f"s_load_dwordx2 {s(pDs,2)}, s[0:1], {KA['Dskip_b']}")
    A.e(f"s_load_dwordx2 {s(pOut,2)}, s[0:1], {KA['out']}")
    A.e(f"s_load_dwordx2 {s(pWs,2)}, s[0:1], {KA['ws']}")
    vLane = V.alloc(name="lane"); vTmp = V.alloc(4, 2);
    A.e(f"v_lshrrev_b32 {v(vTmp)}, 6, v0")
    A.e(f"v_and_b32 {v(vLane)}, 63, v0")
    A.e(f"v_readfirstlane_b32 s{sW}, {v(vTmp)}")
    A.e(f"s_and_b32 s{sT0}, {wg}, 7")
    A.e(f"s_lshr_b32 s{sT1}, {wg}, 3")
    A.e(f"s_lshl_b32 s{sRt}, s{sT0}, 2")
    A.e(f"s_and_b32 s{sT0}, s{sT1}, 3")
    A.e(f"s_add_u32 s{sRt}, s{sRt}, s{sT0}")
    A.e(f"s_lshr_b32 s{sDt}, s{sT1}, 2")
    A.e(f"s_and_b32 s{sTh}, s{sW}, 1")
    A.e(f"s_lshr_b32 s{sKh}, s{sW}, 1")
    vCoff = V.alloc(name="coff"); vHoff = V.alloc(name="hoff")
    A.e(f"v_lshrrev_b32 {v(vTmp)}, 3, {v(vLane)}")
    A.e(f"v_and_b32 {v(vTmp+1)}, 7, {v(vLane)}")
    A.e(f"v_xor_b32 {v(vTmp+1)}, {v(vTmp)}, {v(vTmp+1)}")
    A.e(f"v_lshlrev_b32 {v(vTmp+1)}, 4, {v(vTmp+1)}")
    A.e(f"v_mul_u32_u24 {v(vCoff)}, 1280, {v(vTmp)}")
    A.e(f"v_add_u32 {v(vCoff)}, {v(vCoff)}, {v(vTmp+1)}")
    A.e(f"v_lshlrev_b32 {v(vHoff)}, 4, {v(vLane)}")
    vCa = V.alloc(4, name="ca")
    A.e(f"v_and_b32 {v(vTmp)}, 15, {v(vLane)}")
    A.e(f"v_lshrrev_b32 {v(vTmp+1)}, 4, {v(vLane)}")
    A.e(f"v_and_b32 {v(vTmp+2)}, 1, {v(vTmp+1)}")
    A.e(f"v_and_b32 {v(vTmp+3)}, 7, {v(vTmp)}")
    A.e(f"v_xor_b32 {v(vTmp+2)}, {v(vTmp+2)}, {v(vTmp+3)}")
    A.e(f"v_lshlrev_b32 {v(vTmp+2)}, 4, {v(vTmp+2)}")
    A.e(f"v_lshlrev_b32 {v(vTmp)}, 7, {v(vTmp)}")
    A.e(f"v_add_u32 {v(vTmp+2)}, {v(vTmp+2)}, {v(vTmp)}")
    A.e(f"v_lshrrev_b32 {v(vTmp+1)}, 1, {v(vTmp+1)}")
    A.e(f"v_mul_u32_u24 {v(vTmp+1)}, 10240, {v(vTmp+1)}")
    A.e(f"v_add_u32 {v(vTmp+2)}, {v(vTmp+2)}, {v(vTmp+1)}")
    A.e(f"s_lshl_b32 s{sT0}, s{sKh}, 6")
    A.e(f"v_xor_b32 {v(vCa)}, s{sT0}, {v(vTmp+2)}")
    A.e(f"v_xor_b32 {v(vCa+1)}, 32, {v(vCa)}")
    A.e(f"v_add_u32 {v(vCa+2)}, 40960, {v(vCa)}")
    A.e(f"v_add_u32 {v(vCa+3)}, 40960, {v(vCa+1)}")
    A.e("s_waitcnt lgkmcnt(0)")
    A.e(f"s_cmp_eq_u32 s{sTh}, 0")
    A.e(f"s_cselect_b32 s{rC}, s{pCre}, s{pCim}")
    A.e(f"s_cselect_b32 s{rC+1}, s{pCre+1}, s{pCim+1}")
    A.e(f"s_and_b32 s{rC+1}, s{rC+1}, 0xffff")
    A.e(f"s_mov_b32 s{rC+2}, {640*1280}")
    A.e(f"s_mov_b32 s{rC+3}, 0x{SRD3:08x}")
    srd_off(A, rH, pWs, WS_H, WS_H_SZ)
    A.e(f"s_mul_i32 s{sT0}, s{sDt}, 80")
    A.e(f"s_lshl_b32 s{sT1}, s{sKh}, 3")
    A.e(f"s_add_u32 s{sT0}, s{sT0}, s{sT1}")
    A.e(f"s_mul_i32 s{sCoff}, s{sT0}, 1280")
    for i in range(1, 5):
        A.e(f"s_add_u32 s{sCoff+i}, s{sCoff+i-1}, {16*1280}")
    A.e(f"s_mul_i32 s{sLdsW}, s{sTh}, 10240")
    A.e(f"s_lshl_b32 s{sT1}, s{sKh}, 10")
    A.e(f"s_add_u32 s{sLdsW}, s{sLdsW}, s{sT1}")
    A.e(f"s_lshl_b32 s{sT0}, s{sRt}, 2")
    A.e(f"s_lshl_b32 s{sT1}, s{sTh}, 1")
    A.e(f"s_add_u32 s{sT0}, s{sT0}, s{sT1}")
    sTau0 = S.alloc()
    A.e(f"s_mov_b32 s{sTau0}, s{sT0}")
    A.e(f"s_mul_i32 s{sT0}, s{sT0}, 40")
    A.e(f"s_lshl_b32 s{sT1}, s{sKh}, 1")
    A.e(f"s_add_u32 s{sT0}, s{sT0}, s{sT1}")
    A.e(f"s_lshl_b32 s{sH0}, s{sT0}, 10")
    A.e(f"s_add_u32 s{sH1}, s{sH0}, {40*1024}")

    NS = 4; SLOT = 20480
    vAcc = V.alloc(40, 4, "acc")
    vCf = V.alloc(40, 4, "cf")
    vHb = V.alloc(64, 4, "hb")
    def acc(dt_, tt): return vAcc + (dt_ * 2 + tt) * 4
    def hb(st, kk, tt): return vHb + (st % 4) * 16 + (kk * 2 + tt) * 4

    def issue_dma(st, i):
        A.e(f"s_add_u32 m0, s{sLdsW}, {(st % NS) * SLOT + i * 2048}")
        A.e("s_nop 0")
        A.e(f"buffer_load_dwordx4 {v(vCoff)}, {s(rC,4)}, s{sCoff+i} offen lds")
    def issue_h(st, kk, tt):
        A.e(f"buffer_load_dwordx4 {v(hb(st,kk,tt),4)}, {v(vHoff)}, {s(rH,4)}, s{sH0 if tt == 0 else sH1} offen offset:{kk*1024}")
    def adv():
        A.e(f"v_add_u32 {v(vCoff)}, 128, {v(vCoff)}")
        A.e(f"v_add_u32 {v(vHoff)}, 4096, {v(vHoff)}")
    def issue_stage(st):
        for i in range(5): issue_dma(st, i)
        for kk in range(2):
            for tt in range(2): issue_h(st, kk, tt)
        adv()
    ST.mark()
    for st in range(3): issue_stage(st)

    NST = 10
    for st in range(NST):
        n_after = min(NST - 1, st + 2) - st
        A.e(f"s_waitcnt vmcnt({9 * n_after})")
        A.e("s_barrier")
        slot = st % NS
        base = slot * SLOT if slot < 2 else (slot - 2) * SLOT
        ar = 0 if slot < 2 else 2
        for kk in range(2):
            for d_ in range(5):
                A.e(f"ds_read_b128 {v(vCf + (kk*5 + d_)*4, 4)}, {v(vCa + ar + kk)} offset:{base + d_*2048}")
        pend = []
        if st + 3 < NST:
            pend = [("dma", i) for i in range(5)] + [("h", kk, tt) for kk in range(2) for tt in range(2)]
        def do_pend(n):
            for _ in range(n):
                if pend:
                    p = pend.pop(0)
                    if p[0] == "dma": issue_dma(st + 3, p[1])
                    else: issue_h(st + 3, p[1], p[2])
        do_pend(2)
        for kk in range(2):
            A.e(f"s_waitcnt lgkmcnt({5 if kk == 0 else 0})")
            for d_ in range(5):
                for tt in range(2):
                    cin = "0" if (st == 0 and kk == 0) else v(acc(d_, tt), 4)
                    A.e(f"v_mfma_f32_16x16x32_bf16 {v(acc(d_,tt),4)}, {v(vCf + (kk*5+d_)*4,4)}, {v(hb(st,kk,tt),4)}, {cin}")
                if d_ in (1, 3): do_pend(1)
            do_pend(1)
        do_pend(9)
        if st + 3 < NST: adv()
    A.c("exchange k-halves")
    ST.mark()
    A.e("s_barrier")
    vEx = V.alloc(2)
    A.e(f"s_mul_i32 s{sT0}, s{sW}, 5120")
    A.e(f"v_lshlrev_b32 {v(vEx)}, 4, {v(vLane)}")
    A.e(f"v_add_u32 {v(vEx)}, s{sT0}, {v(vEx)}")
    A.e(f"s_xor_b32 s{sT1}, s{sW}, 2")
    A.e(f"s_mul_i32 s{sT1}, s{sT1}, 5120")
    A.e(f"v_lshlrev_b32 {v(vEx+1)}, 4, {v(vLane)}")
    A.e(f"v_add_u32 {v(vEx+1)}, s{sT1}, {v(vEx+1)}")
    srd(A, rX, pX, 2048*1280); srd(A, rDs, pDs, 1280); srd(A, rOut, pOut, 2048*640*4)
    srd_off(A, rAT, pWs, WS_AT, WS_AT_SZ); srd_off(A, rG, pWs, WS_G, WS_G_SZ)
    vT = V.alloc(); vD = V.alloc(); vXo = V.alloc(); vAo = V.alloc(); vOo = V.alloc(); vGv = V.alloc()
    A.e(f"s_add_u32 s{sT0}, s{sTau0}, s{sKh}")
    A.e(f"s_lshl_b32 s{sT0}, s{sT0}, 4")
    A.e(f"v_and_b32 {v(vT)}, 15, {v(vLane)}")
    A.e(f"v_add_u32 {v(vT)}, s{sT0}, {v(vT)}")
    A.e(f"s_mul_i32 s{sT1}, s{sDt}, 80")
    A.e(f"v_lshrrev_b32 {v(vD)}, 4, {v(vLane)}")
    A.e(f"v_lshlrev_b32 {v(vD)}, 2, {v(vD)}")
    A.e(f"v_add_u32 {v(vD)}, s{sT1}, {v(vD)}")
    A.e(f"v_mul_u32_u24 {v(vXo)}, 1280, {v(vT)}")
    A.e(f"v_lshlrev_b32 {v(vTmp)}, 1, {v(vD)}")
    A.e(f"v_add_u32 {v(vXo)}, {v(vXo)}, {v(vTmp)}")
    A.e(f"v_lshlrev_b32 {v(vOo)}, 1, {v(vXo)}")
    A.e(f"v_lshlrev_b32 {v(vAo)}, 12, {v(vD)}")
    A.e(f"v_lshlrev_b32 {v(vTmp+1)}, 1, {v(vT)}")
    A.e(f"v_add_u32 {v(vAo)}, {v(vAo)}, {v(vTmp+1)}")
    A.e(f"v_lshlrev_b32 {v(vTmp+2)}, 2, {v(vT)}")
    vXv = vHb
    vDv = vHb + 10
    vAv = vHb + 20
    flags = " sc1" if handoff else ""
    A.e(f"buffer_load_dword {v(vGv)}, {v(vTmp+2)}, {s(rG,4)}, 0 offen")
    for d_ in range(5):
        A.e(f"buffer_load_dwordx2 {v(vXv+2*d_,2)}, {v(vXo)}, {s(rX,4)}, 0 offen offset:{d_*32}")
        A.e(f"buffer_load_dwordx2 {v(vDv+2*d_,2)}, {v(vTmp)}, {s(rDs,4)}, 0 offen offset:{d_*32}")
    sAoff = S.alloc()
    for d_ in range(5):
        for r in range(4):
            if d_ == 0 and r == 0:
                A.e(f"s_mov_b32 s{sAoff}, 0")
            else:
                A.e(f"s_mov_b32 s{sAoff}, {(d_*16 + r) * 4096}")
            A.e(f"buffer_load_ushort {v(vAv + d_*4 + r)}, {v(vAo)}, {s(rAT,4)}, s{sAoff} offen{flags}")
    Lk1 = A.newlabel("g2k1"); Ljoin = A.newlabel("g2join")
    vKeep = vCf
    A.e(f"s_cmp_eq_u32 s{sKh}, 0")
    A.e(f"s_cbranch_scc0 {Lk1}")
    for kh in range(2):
        if kh == 1: A.label(Lk1)
        A.e("s_nop 7")
        for d_ in range(5):
            A.e(f"ds_write_b128 {v(vEx)}, {v(acc(d_, 1-kh),4)} offset:{d_*1024}")
        for d_ in range(5):
            for r in range(4):
                A.e(f"v_mov_b32 {v(vKeep + d_*4 + r)}, {v(acc(d_, kh) + r)}")
        if kh == 0: A.e(f"s_branch {Ljoin}")
    A.label(Ljoin)
    A.e("s_waitcnt lgkmcnt(0)")
    A.e("s_barrier")
    vPart = vCf + 20
    for d_ in range(5):
        A.e(f"ds_read_b128 {v(vPart + d_*4, 4)}, {v(vEx+1)} offset:{d_*1024}")
    A.e("s_waitcnt vmcnt(0) lgkmcnt(0)")
    for d_ in range(5):
        for r in range(4):
            k = vKeep + d_*4 + r
            A.e(f"v_add_f32 {v(k)}, {v(k)}, {v(vPart + d_*4 + r)}")
        x0 = vXv + 2*d_; q0 = vDv + 2*d_
        t0, t1, t2, t3 = vTmp, vTmp+1, vTmp+2, vTmp+3
        for r in range(4):
            src = x0 + r // 2; dsrc = q0 + r // 2
            if r % 2 == 0:
                A.e(f"v_lshlrev_b32 {v(t0)}, 16, {v(src)}")
                A.e(f"v_lshlrev_b32 {v(t1)}, 16, {v(dsrc)}")
            else:
                A.e(f"v_and_b32 {v(t0)}, 0xffff0000, {v(src)}")
                A.e(f"v_and_b32 {v(t1)}, 0xffff0000, {v(dsrc)}")
            k = vKeep + d_*4 + r
            A.e(f"v_fma_f32 {v(k)}, {v(t0)}, {v(t1)}, {v(k)}")
            A.e(f"v_lshlrev_b32 {v(t2)}, 16, {v(vAv + d_*4 + r)}")
            A.e(f"v_sub_f32 {v(t2)}, {v(t2)}, {v(k)}")
            A.e(f"v_fma_f32 {v(k)}, {v(vGv)}, {v(t2)}, {v(k)}")
        A.e(f"buffer_store_dwordx4 {v(vKeep + d_*4, 4)}, {v(vOo)}, {s(rOut,4)}, 0 offen offset:{d_*64}")
    A.e("s_waitcnt vmcnt(0)")
    ST.mark()
    ST.flush(pWs, wg, vTmp, sW, region=3)
    return V.hi, S.hi
```

```python
from asmlib import *
from g1 import cmul_pk, csq, LOG2E, INV2PI

def cmul(A, dst, x, y, conj_y=False):
    cmul_pk(A, dst, y, x, conj_w=conj_y)

def gen_kg(A, wg, stamps=False, tsoff=0):
    S = RegAlloc(8, 100, "s"); V = RegAlloc(1, 256, "v")
    ST = Stamps(A, S, 6, stamps); ST.mark()
    pLogA = S.alloc(4, 4); pAim = pLogA + 2
    pCre = S.alloc(4, 4); pCim = pCre + 2
    pLdt = S.alloc(2, 2); pWs = S.alloc(2, 2)
    rP = S.alloc(4, 4); rK = S.alloc(4, 4)
    sW = S.alloc(); sD = S.alloc(); sMh = S.alloc(); sT0 = S.alloc(); sT1 = S.alloc(); sBase = S.alloc(); sExec = S.alloc(2, 2)
    A.c("==== KG ====")
    A.e(f"s_load_dwordx4 {s(pLogA,4)}, s[0:1], {KA['logA']}")
    A.e(f"s_load_dwordx4 {s(pCre,4)}, s[0:1], {KA['Cre_a']}")
    A.e(f"s_load_dwordx2 {s(pLdt,2)}, s[0:1], {KA['logdt_a']}")
    A.e(f"s_load_dwordx2 {s(pWs,2)}, s[0:1], {KA['ws']}")
    vLane = V.alloc(); T = V.alloc(8, 2); t = [T + i for i in range(8)]
    A.e(f"v_lshrrev_b32 {v(t[0])}, 6, v0")
    A.e(f"v_and_b32 {v(vLane)}, 63, v0")
    A.e(f"v_readfirstlane_b32 s{sW}, {v(t[0])}")
    A.e("s_nop 3")
    A.e(f"s_and_b32 s{sMh}, s{sW}, 1")
    A.e(f"s_lshr_b32 s{sT0}, s{sW}, 1")
    A.e(f"s_lshl_b32 s{sD}, {wg}, 1")
    A.e(f"s_add_u32 s{sD}, s{sD}, s{sT0}")
    UNIT = 14416
    A.e(f"s_mul_i32 s{sBase}, s{sW}, {UNIT}")
    vOff = V.alloc()
    A.e(f"s_lshl_b32 s{sT0}, s{sD}, 8")
    A.e(f"s_lshl_b32 s{sT1}, s{sMh}, 7")
    A.e(f"s_add_u32 s{sT0}, s{sT0}, s{sT1}")
    A.e(f"v_lshlrev_b32 {v(vOff)}, 1, {v(vLane)}")
    A.e(f"v_add_u32 {v(vOff)}, s{sT0}, {v(vOff)}")
    A.e("s_waitcnt lgkmcnt(0)")
    vIn = V.alloc(5)
    for k, p in enumerate((pLogA, pAim, pCre, pCim)):
        srd(A, rP, p, 640 * 256)
        A.e(f"buffer_load_ushort {v(vIn+k)}, {v(vOff)}, {s(rP,4)}, 0 offen")
        A.e("s_nop 0")
    srd(A, rP, pLdt, 1280)
    A.e(f"s_lshl_b32 s{sT0}, s{sD}, 1")
    A.e(f"v_mov_b32 {v(t[0])}, s{sT0}")
    A.e(f"buffer_load_ushort {v(vIn+4)}, {v(t[0])}, {s(rP,4)}, 0 offen")
    vWa = V.alloc()
    A.e(f"v_lshlrev_b32 {v(vWa)}, 2, {v(vLane)}")
    A.e(f"v_add_u32 {v(vWa)}, s{sBase}, {v(vWa)}")
    A.e("s_waitcnt vmcnt(0)")
    for k in range(5): A.e(f"v_lshlrev_b32 {v(vIn+k)}, 16, {v(vIn+k)}")
    def bf16r(d):
        A.e(f"v_cvt_pk_bf16_f32 {v(d)}, {v(d)}, {v(d)}")
        A.e(f"v_lshlrev_b32 {v(d)}, 16, {v(d)}")
    vDt = V.alloc(); vAr = V.alloc(); vAi = V.alloc()
    A.e(f"v_mul_f32 {v(vDt)}, 0x{LOG2E:08x}, {v(vIn+4)}")
    A.e(f"v_mul_f32 {v(vAr)}, 0x{LOG2E:08x}, {v(vIn)}")
    A.e(f"v_exp_f32 {v(vDt)}, {v(vDt)}")
    A.e(f"v_exp_f32 {v(vAr)}, {v(vAr)}")
    A.e("s_nop 0")
    bf16r(vDt); bf16r(vAr)
    A.e(f"v_mul_f32 {v(vAr)}, -{v(vAr)}, {v(vDt)}")
    A.e(f"v_mul_f32 {v(vAi)}, {v(vIn+1)}, {v(vDt)}")
    A.e(f"v_mul_f32 {v(vAr)}, 0x{LOG2E:08x}, {v(vAr)}")
    A.e(f"v_mul_f32 {v(vAi)}, 0x{INV2PI:08x}, {v(vAi)}")
    def cexp(dst, sc):
        import struct
        lit = "0x%08x" % struct.unpack("<I", struct.pack("<f", float(sc)))[0]
        A.e(f"v_mul_f32 {v(t[0])}, {lit}, {v(vAr)}")
        A.e(f"v_mul_f32 {v(t[1])}, {lit}, {v(vAi)}")
        A.e(f"v_exp_f32 {v(t[0])}, {v(t[0])}")
        A.e(f"v_fract_f32 {v(t[1])}, {v(t[1])}")
        A.e(f"v_cos_f32 {v(t[2])}, {v(t[1])}")
        A.e(f"v_sin_f32 {v(t[3])}, {v(t[1])}")
        A.e("s_nop 0")
        A.e(f"v_mul_f32 {v(dst)}, {v(t[0])}, {v(t[2])}")
        A.e(f"v_mul_f32 {v(dst+1)}, {v(t[0])}, {v(t[3])}")
    FOFF = 0; GOFF = 21 * 272
    names = {}
    def pair(n):
        names[n] = V.alloc(2, 2); return names[n]
    cvt_tmp = [V.alloc() for _ in range(4)]
    ctr = [0]
    def put(reg, off):
        tmp = cvt_tmp[ctr[0] % 4]; ctr[0] += 1
        A.e(f"v_cvt_pk_bf16_f32 {v(tmp)}, {v(reg)}, {v(reg+1)}")
        A.e(f"ds_write_b32 {v(vWa)}, {v(tmp)} offset:{off}")
    W1 = pair("W1"); W8 = pair("W8"); W256 = pair("W256"); W16 = pair("W16")
    cexp(W1, 1); cexp(W8, 8); cexp(W256, 256)
    G = [pair("Ga"), pair("Gb"), pair("Gc"), pair("Gd")]
    A.e(f"v_add_f32 {v(t[4])}, {v(vDt)}, {v(vDt)}")
    A.e(f"v_mul_f32 {v(G[0])}, {v(vIn+2)}, {v(t[4])}")
    A.e(f"v_mul_f32 {v(G[0]+1)}, -{v(vIn+3)}, {v(t[4])}")
    cmul(A, G[1], G[0], W8, conj_y=True)
    cmul(A, W16, W8, W8)
    one = pair("one")
    A.e(f"v_mov_b32 {v(one)}, 1.0"); A.e(f"v_mov_b32 {v(one+1)}, 0")
    W2 = pair("W2"); W3 = pair("W3"); W4 = pair("W4"); W6 = pair("W6"); X = pair("X"); Y = pair("Y")
    W512 = pair("W512"); W1024 = pair("W1024"); W768 = pair("W768"); W1536 = pair("W1536")
    fsteps = []
    def F(row, reg): return lambda: put(reg, FOFF + row * 272)
    def M(dst, x, y): return lambda: cmul(A, dst, x, y)
    fsteps += [F(0, one), F(1, W1), M(W2, W1, W1), F(2, W2), M(W3, W2, W1), F(3, W3), M(W4, W2, W2), F(4, W4),
               M(X, W4, W1), F(5, X), M(W6, W4, W2), F(6, W6), M(Y, W4, W3), F(7, Y),
               F(16, W256), M(W512, W256, W256), F(8, W512), M(X, W512, W4), F(9, X), M(W1024, W512, W512), F(10, W1024),
               M(Y, W1024, W256), F(11, Y), M(W768, W512, W256), F(12, W768), M(X, W768, W4), F(13, X),
               M(W1536, W1024, W512), F(14, W1536), M(Y, W1536, W256), F(15, Y),
               M(X, W256, W2), F(17, X), M(Y, W256, W4), F(18, Y), M(X, W256, W6), F(19, X), M(Y, W1024, W1024), F(20, Y)]
    cur = [G[0], G[1]]; alt = [G[2], G[3]]
    put(cur[0], GOFF + 0 * 272); put(cur[1], GOFF + 1 * 272)
    for q in range(2, 32, 2):
        for par in range(2):
            cmul(A, alt[par], cur[par], W16, conj_y=True)
        for _ in range(3):
            if fsteps: fsteps.pop(0)()
        for par in range(2):
            put(alt[par], GOFF + (q + par) * 272)
        cur, alt = alt, cur
    while fsteps: fsteps.pop(0)()
    ST.mark()
    vRa = V.alloc()
    A.e(f"v_and_b32 {v(t[0])}, 31, {v(vLane)}")
    A.e(f"v_mul_u32_u24 {v(t[0])}, 272, {v(t[0])}")
    A.e(f"v_lshrrev_b32 {v(t[1])}, 5, {v(vLane)}")
    A.e(f"v_lshlrev_b32 {v(t[1])}, 4, {v(t[1])}")
    A.e(f"v_add3_u32 {v(vRa)}, {v(t[0])}, {v(t[1])}, s{sBase}")
    vAcc = V.alloc(16, 4); vFa = V.alloc(8, 4); vFb = V.alloc(8, 4)
    A.e("s_waitcnt lgkmcnt(0)")
    def rd(st):
        A.e(f"ds_read_b128 {v(vFa + 4*(st%2),4)}, {v(vRa)} offset:{FOFF + 32*st}")
        A.e(f"ds_read_b128 {v(vFb + 4*(st%2),4)}, {v(vRa)} offset:{GOFF + 32*st}")
    rd(0)
    for st in range(8):
        if st < 7: rd(st + 1)
        A.e(f"s_waitcnt lgkmcnt({2 if st < 7 else 0})")
        cin = "0" if st == 0 else v(vAcc, 16)
        A.e(f"v_mfma_f32_32x32x16_bf16 {v(vAcc,16)}, {v(vFa + 4*(st%2),4)}, {v(vFb + 4*(st%2),4)}, {cin}")
    A.e("s_nop 15")
    vL16 = V.alloc()
    A.e(f"v_lshlrev_b32 {v(vL16)}, 4, {v(vLane)}")
    Lodd = A.newlabel("kgodd"); Lend = A.newlabel("kgend")
    A.e(f"s_cmp_eq_u32 s{sMh}, 0")
    A.e(f"s_cbranch_scc1 {Lodd}_e")
    A.e(f"v_add_u32 {v(t[0])}, s{sBase}, {v(vL16)}")
    for k in range(3):
        A.e(f"ds_write_b128 {v(t[0])}, {v(vAcc + 4*k,4)} offset:{1024*k}")
    A.e("s_waitcnt lgkmcnt(0)")
    A.e("s_barrier")
    A.e(f"s_branch {Lend}")
    A.label(f"{Lodd}_e")
    A.e("s_barrier")
    A.e(f"s_add_u32 s{sT0}, s{sBase}, {UNIT}")
    A.e(f"v_add_u32 {v(t[0])}, s{sT0}, {v(vL16)}")
    vPa = V.alloc(12, 4)
    for k in range(3):
        A.e(f"ds_read_b128 {v(vPa + 4*k,4)}, {v(t[0])} offset:{1024*k}")
    A.e("s_waitcnt lgkmcnt(0)")
    for k in range(12):
        A.e(f"v_add_f32 {v(vAcc+k)}, {v(vAcc+k)}, {v(vPa+k)}")
    vQ = V.alloc(); vH = V.alloc()
    A.e(f"v_and_b32 {v(vQ)}, 31, {v(vLane)}")
    A.e(f"v_lshrrev_b32 {v(vH)}, 5, {v(vLane)}")
    A.e(f"v_lshlrev_b32 {v(t[0])}, 5, {v(vQ)}")
    A.e(f"v_lshlrev_b32 {v(t[1])}, 4, {v(vH)}")
    A.e(f"v_add3_u32 {v(t[0])}, {v(t[0])}, {v(t[1])}, s{sBase}")
    A.e(f"ds_write_b128 {v(t[0])}, {v(vAcc,4)}")
    A.e(f"v_lshlrev_b32 {v(t[0])}, 3, {v(vQ)}")
    A.e(f"v_lshlrev_b32 {v(t[1])}, 8, {v(vH)}")
    A.e(f"v_add3_u32 {v(t[0])}, {v(t[0])}, {v(t[1])}, s{sBase}")
    A.e(f"ds_write_b64 {v(t[0])}, {v(vAcc+4,2)} offset:{384*4}")
    A.e(f"v_lshlrev_b32 {v(t[0])}, 2, {v(vQ)}")
    A.e(f"v_add3_u32 {v(t[0])}, {v(t[0])}, {v(t[1])}, s{sBase}")
    A.e(f"ds_write_b32 {v(t[0])}, {v(vAcc+6)} offset:{512*4}")
    A.e(f"ds_write_b32 {v(t[0])}, {v(vAcc+7)} offset:{544*4}")
    A.e(f"v_lshlrev_b32 {v(t[0])}, 4, {v(vQ)}")
    A.e(f"v_mul_u32_u24 {v(t[1])}, {384*4}, {v(vH)}")
    A.e(f"v_add3_u32 {v(t[0])}, {v(t[0])}, {v(t[1])}, s{sBase}")
    A.e(f"ds_write_b128 {v(t[0])}, {v(vAcc+8,4)} offset:{256*4}")
    srd_off(A, rK, pWs, WS_KR, WS_KR_SZ)
    A.e(f"s_mul_i32 s{sT0}, s{sD}, {KR_STRIDE}")
    vW = V.alloc(8, 4); vO = V.alloc(16, 4); vSt = V.alloc(); vPar = V.alloc()
    sParM = S.alloc(2, 2); sHiM = S.alloc(2, 2)
    A.e(f"v_and_b32 {v(vPar)}, 1, {v(vLane)}")
    A.e(f"v_cmp_eq_u32 {s(sParM,2)}, 1, {v(vPar)}")
    A.e(f"v_cmp_lt_u32 {s(sHiM,2)}, 31, {v(vLane)}")
    A.e(f"v_lshlrev_b32 {v(t[0])}, 2, {v(vLane)}")
    A.e(f"v_add_u32 {v(t[0])}, s{sBase}, {v(t[0])}")
    A.e(f"v_lshlrev_b32 {v(t[1])}, 3, {v(vLane)}")
    A.e(f"v_add_u32 {v(t[1])}, s{sBase}, {v(t[1])}")
    A.e(f"v_sub_u32 {v(vSt)}, 63, {v(vLane)}")
    A.e(f"v_lshlrev_b32 {v(vSt)}, 4, {v(vSt)}")
    A.e("s_waitcnt lgkmcnt(0)")
    A.e(f"v_add_u32 {v(t[2])}, {576*4}, {v(t[0])}")
    A.e(f"v_add_u32 {v(t[3])}, {512*4}, {v(t[0])}")
    A.e(f"v_add_u32 {v(t[4])}, {384*4}, {v(t[1])}")
    A.e(f"ds_read2_b32 {v(vW,2)}, {v(t[2])} offset0:0 offset1:1")
    A.e(f"ds_read2_b32 {v(vW+2,2)}, {v(t[3])} offset0:0 offset1:1")
    A.e(f"ds_read_b64 {v(vW+4,2)}, {v(t[4])}")
    A.e(f"ds_read_b32 {v(vW+6)}, {v(t[4])} offset:8")
    A.e("s_waitcnt lgkmcnt(0)")
    for k in range(2):
        V0, V1 = vW + 2*k, vW + 2*k + 1
        o = vO + 4*k
        A.e(f"v_cvt_pk_bf16_f32 {v(o)}, {v(V1)}, {v(V1)}")
        A.e(f"v_cvt_pk_bf16_f32 {v(t[5])}, {v(V1)}, {v(V0)}")
        A.e(f"v_cvt_pk_bf16_f32 {v(o+2)}, {v(V0)}, {v(V0)}")
        A.e(f"v_cndmask_b32 {v(o+1)}, {v(t[5])}, {v(o)}, {s(sParM,2)}")
        A.e(f"v_mov_b32 {v(o+3)}, {v(o+2)}")
    V0, V1, V2 = vW+4, vW+5, vW+6
    o = vO + 8
    A.e(f"v_cvt_pk_bf16_f32 {v(o)}, {v(V2)}, {v(V2)}")
    A.e(f"v_cvt_pk_bf16_f32 {v(o+1)}, {v(V1)}, {v(V1)}")
    A.e(f"v_cvt_pk_bf16_f32 {v(o+2)}, {v(V1)}, {v(V0)}")
    A.e(f"v_cvt_pk_bf16_f32 {v(o+3)}, {v(V0)}, {v(V0)}")
    A.e(f"v_lshlrev_b32 {v(t[2])}, 5, {v(vLane)}")
    A.e(f"v_lshlrev_b32 {v(t[3])}, 4, {v(vLane)}")
    A.e(f"v_add_u32 {v(t[3])}, {128*4}, {v(t[3])}")
    A.e(f"v_cndmask_b32 {v(t[2])}, {v(t[2])}, {v(t[3])}, {s(sHiM,2)}")
    A.e(f"v_add_u32 {v(t[2])}, s{sBase}, {v(t[2])}")
    A.e(f"ds_read_b128 {v(vW,4)}, {v(t[2])}")
    A.e(f"ds_read_b128 {v(vW+4,4)}, {v(t[2])} offset:16")
    for k in range(3):
        A.e(f"buffer_store_dwordx4 {v(vO + 4*k,4)}, {v(vSt)}, {s(rK,4)}, s{sT0} offen offset:{1024*k}")
    A.e("s_waitcnt lgkmcnt(0)")
    W = [vW + i for i in range(8)]
    o = vO + 12
    sel = [((7,4),(6,3)), ((5,2),(4,2)), ((3,2),(2,1)), ((1,0),(0,0))]
    for k, ((lo0, lo1), (hi0, hi1)) in enumerate(sel):
        A.e(f"v_cndmask_b32 {v(t[4])}, {v(W[lo0])}, {v(W[lo1])}, {s(sHiM,2)}")
        A.e(f"v_cndmask_b32 {v(t[5])}, {v(W[hi0])}, {v(W[hi1])}, {s(sHiM,2)}")
        A.e(f"v_cvt_pk_bf16_f32 {v(o+k)}, {v(t[4])}, {v(t[5])}")
    A.e(f"buffer_store_dwordx4 {v(o,4)}, {v(vSt)}, {s(rK,4)}, s{sT0} offen offset:3072")
    A.e(f"v_mov_b32 {v(t[4])}, 0")
    A.e(f"v_lshlrev_b32 {v(t[5])}, 2, {v(vLane)}")
    A.e(f"v_cmp_gt_u32 vcc, 16, {v(vLane)}")
    A.e(f"s_and_saveexec_b64 {s(sExec,2)}, vcc")
    A.e(f"s_add_u32 s{sT0}, s{sT0}, 4096")
    A.e(f"buffer_store_dword {v(t[4])}, {v(t[5])}, {s(rK,4)}, s{sT0} offen")
    A.e(f"s_mov_b64 exec, {s(sExec,2)}")
    A.label(Lend)
    ST.mark()
    ST.flush(pWs, wg, T, sW, region=1)
    return V.hi, S.hi
```

```python
from asmlib import *
from g1 import LOG2E

def gen_ut(A, wg, S0=8, lds_base=0):
    S = RegAlloc(S0, 100, "s"); V = RegAlloc(1, 256, "v")
    pU = S.alloc(2, 2); pGw = S.alloc(2, 2); pWs = S.alloc(2, 2)
    rU = S.alloc(4, 4); rW = S.alloc(4, 4); rUT = S.alloc(4, 4); rG = S.alloc(4, 4)
    sW = S.alloc(); sT0 = S.alloc(); sT1 = S.alloc(); sRt = S.alloc(); sDt = S.alloc(); sExec = S.alloc(2, 2)
    A.c("==== UT ====")
    A.e(f"s_load_dwordx2 {s(pU,2)}, s[0:1], {KA['u']}")
    A.e(f"s_load_dwordx2 {s(pGw,2)}, s[0:1], {KA['gate']}")
    A.e(f"s_load_dwordx2 {s(pWs,2)}, s[0:1], {KA['ws']}")
    vLane = V.alloc(); T = V.alloc(8, 2); t = [T + i for i in range(8)]
    A.e(f"v_lshrrev_b32 {v(t[0])}, 6, v0")
    A.e(f"v_and_b32 {v(vLane)}, 63, v0")
    A.e(f"v_readfirstlane_b32 s{sW}, {v(t[0])}")
    A.e(f"s_lshr_b32 s{sRt}, {wg}, 3")
    A.e(f"s_and_b32 s{sDt}, {wg}, 7")
    vTile = V.alloc(12, 4); vLa = V.alloc(3); vGo = V.alloc(3)
    A.e(f"s_mul_i32 s{sT0}, s{sRt}, {64*1280}")
    A.e(f"s_mul_i32 s{sT1}, s{sDt}, 160")
    A.e(f"s_add_u32 s{sT0}, s{sT0}, s{sT1}")
    for k in range(3):
        A.e(f"v_add_u32 {v(t[0])}, {256*k}, v0")
        A.e(f"v_mul_u32_u24 {v(t[1])}, 205, {v(t[0])}")
        A.e(f"v_lshrrev_b32 {v(t[1])}, 11, {v(t[1])}")
        A.e(f"v_mul_u32_u24 {v(t[2])}, 10, {v(t[1])}")
        A.e(f"v_sub_u32 {v(t[2])}, {v(t[0])}, {v(t[2])}")
        A.e(f"v_lshlrev_b32 {v(t[2])}, 4, {v(t[2])}")
        A.e(f"v_mul_u32_u24 {v(vGo+k)}, 1280, {v(t[1])}")
        A.e(f"v_add_u32 {v(vGo+k)}, {v(vGo+k)}, {v(t[2])}")
        A.e(f"v_lshlrev_b32 {v(vLa+k)}, 4, {v(t[0])}")
    A.e("s_waitcnt lgkmcnt(0)")
    srd(A, rU, pU, 2048*1280); srd(A, rW, pGw, 1280)
    srd_off(A, rUT, pWs, WS_UT, WS_UT_SZ); srd_off(A, rG, pWs, WS_G, WS_G_SZ)
    for k in range(2):
        A.e(f"buffer_load_dwordx4 {v(vTile+4*k,4)}, {v(vGo+k)}, {s(rU,4)}, s{sT0} offen")
    A.e(f"v_cmp_gt_u32 vcc, 128, v0")
    A.e(f"s_and_saveexec_b64 {s(sExec,2)}, vcc")
    Lsk = A.newlabel("utsk")
    A.e(f"s_cbranch_execz {Lsk}")
    A.e(f"buffer_load_dwordx4 {v(vTile+8,4)}, {v(vGo+2)}, {s(rU,4)}, s{sT0} offen")
    A.label(Lsk)
    A.e(f"s_mov_b64 exec, {s(sExec,2)}")
    vR = V.alloc(16, 4); vWt = V.alloc(8, 4); vL16 = V.alloc(); vL16b = V.alloc()
    A.e(f"v_lshlrev_b32 {v(vL16)}, 4, {v(vLane)}")
    A.e(f"v_add_u32 {v(vL16b)}, 1024, {v(vL16)}")
    A.e(f"v_cmp_gt_u32 vcc, 16, {v(vLane)}")
    A.e(f"v_mov_b32 {v(t[0])}, 0x7ff00000")
    A.e("s_nop 0")
    A.e(f"v_cndmask_b32 {v(vL16b)}, {v(t[0])}, {v(vL16b)}, vcc")
    A.e(f"s_lshl_b32 s{sT1}, {wg}, 3")
    A.e(f"s_lshl_b32 s{sT0}, s{sW}, 1")
    A.e(f"s_add_u32 s{sT1}, s{sT1}, s{sT0}")
    sRow = S.alloc(); sRo = S.alloc(2)
    A.e(f"s_mov_b32 s{sRow}, s{sT1}")
    A.e(f"s_mul_i32 s{sRo}, s{sT1}, 1280")
    A.e(f"s_add_u32 s{sRo+1}, s{sRo}, 1280")
    A.e(f"buffer_load_dwordx4 {v(vWt,4)}, {v(vL16)}, {s(rW,4)}, 0 offen")
    A.e(f"buffer_load_dwordx4 {v(vWt+4,4)}, {v(vL16b)}, {s(rW,4)}, 0 offen")
    for r in range(2):
        A.e(f"buffer_load_dwordx4 {v(vR+8*r,4)}, {v(vL16)}, {s(rU,4)}, s{sRo+r} offen")
        A.e(f"buffer_load_dwordx4 {v(vR+8*r+4,4)}, {v(vL16b)}, {s(rU,4)}, s{sRo+r} offen")
    A.e("s_waitcnt vmcnt(6)")
    for k in range(2):
        A.e(f"ds_write_b128 {v(vLa+k)}, {v(vTile+4*k,4)} offset:{lds_base}")
    A.e(f"v_cmp_gt_u32 vcc, 128, v0")
    A.e(f"s_and_saveexec_b64 {s(sExec,2)}, vcc")
    A.e(f"ds_write_b128 {v(vLa+2)}, {v(vTile+8,4)} offset:{lds_base}")
    A.e(f"s_mov_b64 exec, {s(sExec,2)}")
    A.e("s_waitcnt lgkmcnt(0)")
    A.e("s_barrier")
    vTa = V.alloc(); vSa = V.alloc(); vOut = V.alloc(12, 4)
    A.e(f"v_lshrrev_b32 {v(t[0])}, 4, {v(vLane)}")
    A.e(f"v_and_b32 {v(t[1])}, 15, {v(vLane)}")
    A.e(f"v_lshrrev_b32 {v(t[2])}, 2, {v(t[1])}")
    A.e(f"v_and_b32 {v(t[3])}, 3, {v(t[1])}")
    A.e(f"v_lshlrev_b32 {v(t[4])}, 3, {v(t[0])}")
    A.e(f"v_add_u32 {v(t[4])}, {v(t[4])}, {v(t[2])}")
    A.e(f"v_mul_u32_u24 {v(t[4])}, 160, {v(t[4])}")
    A.e(f"v_lshlrev_b32 {v(t[3])}, 3, {v(t[3])}")
    A.e(f"v_add_u32 {v(vTa)}, {v(t[4])}, {v(t[3])}")
    A.e(f"v_lshlrev_b32 {v(vSa)}, 12, {v(t[1])}")
    A.e(f"v_lshlrev_b32 {v(t[0])}, 4, {v(t[0])}")
    A.e(f"v_add_u32 {v(vSa)}, {v(vSa)}, {v(t[0])}")
    A.e(f"s_mul_i32 s{sT0}, s{sDt}, {80*4096}")
    A.e(f"s_lshl_b32 s{sT1}, s{sRt}, 7")
    A.e(f"s_add_u32 s{sT0}, s{sT0}, s{sT1}")
    sA = S.alloc(); sB = S.alloc()
    Lno = A.newlabel("utno")
    for k in range(3):
        if k == 2:
            A.e(f"s_cmp_ge_u32 s{sW}, 2")
            A.e(f"s_cbranch_scc1 {Lno}")
        A.e(f"s_add_u32 s{sA}, s{sW}, {4*k}")
        A.e(f"s_lshr_b32 s{sB}, s{sA}, 1")
        A.e(f"s_and_b32 s{sA}, s{sA}, 1")
        A.e(f"s_mul_i32 s{sT1}, s{sA}, {32*160}")
        A.e(f"s_lshl_b32 s{sExec}, s{sB}, 5")
        A.e(f"s_add_u32 s{sT1}, s{sT1}, s{sExec}")
        A.e(f"v_add_u32 {v(t[5])}, s{sT1}, {v(vTa)}")
        A.e(f"ds_read_b64_tr_b16 {v(vOut+4*k,2)}, {v(t[5])} offset:{lds_base}")
        A.e(f"ds_read_b64_tr_b16 {v(vOut+4*k+2,2)}, {v(t[5])} offset:{lds_base + 4*160}")
        A.e(f"s_lshl_b32 s{sB}, s{sB}, 16")
        A.e(f"s_lshl_b32 s{sA}, s{sA}, 6")
        A.e(f"s_add_u32 s{sB}, s{sB}, s{sA}")
        A.e(f"s_add_u32 s{sB}, s{sB}, s{sT0}")
        A.e("s_waitcnt lgkmcnt(0)")
        A.e(f"buffer_store_dwordx4 {v(vOut+4*k,4)}, {v(vSa)}, {s(rUT,4)}, s{sB} offen")
    A.label(Lno)
    A.e("s_waitcnt vmcnt(0)")
    for r in range(2):
        acc = t[r]
        A.e(f"v_mov_b32 {v(acc)}, 0")
        for k in range(8):
            A.e(f"v_dot2_f32_bf16 {v(acc)}, {v(vR+8*r+k)}, {v(vWt+k)}, {v(acc)}")
    for sh in ("row_shr:1", "row_shr:2", "row_shr:4", "row_shr:8", "row_bcast:15", "row_bcast:31"):
        A.e("s_nop 1")
        msk = "row_mask:0xa" if sh == "row_bcast:15" else ("row_mask:0xc" if sh == "row_bcast:31" else "row_mask:0xf")
        for r in range(2):
            A.e(f"v_add_f32_dpp {v(t[r])}, {v(t[r])}, {v(t[r])} {sh} {msk} bank_mask:0xf")
    A.e("s_nop 1")
    for r in range(2):
        A.e(f"v_cvt_pk_bf16_f32 {v(t[r])}, {v(t[r])}, {v(t[r])}")
        A.e(f"v_lshlrev_b32 {v(t[r])}, 16, {v(t[r])}")
        A.e(f"v_mul_f32 {v(t[r])}, 0x{LOG2E ^ 0x80000000:08x}, {v(t[r])}")
        A.e(f"v_exp_f32 {v(t[r])}, {v(t[r])}")
        A.e("s_nop 0")
        A.e(f"v_add_f32 {v(t[r])}, 1.0, {v(t[r])}")
        A.e(f"v_rcp_f32 {v(t[r])}, {v(t[r])}")
        A.e("s_nop 0")
        A.e(f"v_cvt_pk_bf16_f32 {v(t[r])}, {v(t[r])}, {v(t[r])}")
        A.e(f"v_lshlrev_b32 {v(t[r])}, 16, {v(t[r])}")
    A.e(f"s_lshl_b32 s{sT0}, s{sRow}, 2")
    A.e(f"v_mov_b32 {v(t[4])}, s{sT0}")
    A.e(f"v_cmp_eq_u32 vcc, 63, {v(vLane)}")
    A.e(f"s_and_saveexec_b64 {s(sExec,2)}, vcc")
    A.e(f"buffer_store_dwordx2 {v(t[0],2)}, {v(t[4])}, {s(rG,4)}, 0 offen")
    A.e(f"s_mov_b64 exec, {s(sExec,2)}")
    return V.hi, S.hi
```

```python
import sys
from asmlib import *
from g1 import gen_g1
from g2 import gen_g2
from kg import gen_kg
from ut import gen_ut
from cv import gen_cv

HEADER = open("gated_mix__ssm_conv_s4d__ssm_conv_s5__prompt.s.ref").read().split("; Override launch geometry")[0]

def build(out, stamps=False):
    launches = []
    body = ""
    descs = ""
    A = Asm()
    A.e("s_cmp_lt_u32 s2, 256")
    A.e("s_cbranch_scc1 K1_G1")
    A.e("s_cmp_ge_u32 s2, 576")
    A.e("s_cbranch_scc1 K1_done")
    A.e("s_sub_u32 s3, s2, 256")
    A.e("s_cmp_ge_u32 s3, 256")
    A.e("s_cbranch_scc1 K1_KG")
    v1, s1 = gen_ut(A, "s3", lds_base=57664)
    A.label("K1_KG")
    v2, s2_ = gen_kg(A, "s3")
    A.e("s_endpgm")
    A.label("K1_G1")
    v3, s3_ = gen_g1(A, "s2", stamps=stamps, NS=3)
    A.label("K1_done")
    A.e("s_endpgm")
    body += kernel_header("k1_kernel") + A.text()
    descs += ".p2align 6\n" + kernel_desc("k1_kernel", max(v1, v2, v3), 100)
    launches.append("; @launch kernel=k1_kernel grid=(576,1,1) block=(256,1,1) lds=81920")
    A = Asm(); A._lab = 1000
    A.e("s_cmp_ge_u32 s2, 214")
    A.e("s_cbranch_scc1 K2_done")
    v1, _ = gen_cv(A, "s2")
    A.label("K2_done")
    A.e("s_endpgm")
    body += kernel_header("k2_kernel") + A.text()
    descs += ".p2align 6\n" + kernel_desc("k2_kernel", v1, 100)
    launches.append("; @launch kernel=k2_kernel grid=(214,1,1) block=(256,1,1) lds=81920")
    A = Asm(); A._lab = 2000
    A.e("s_cmp_ge_u32 s2, 256")
    A.e("s_cbranch_scc1 K3_done")
    v1, _ = gen_g2(A, "s2")
    A.label("K3_done")
    A.e("s_endpgm")
    body += kernel_header("k3_kernel") + A.text()
    descs += ".p2align 6\n" + kernel_desc("k3_kernel", v1, 100)
    launches.append("; @launch kernel=k3_kernel grid=(256,1,1) block=(256,1,1) lds=81920")
    txt = HEADER + "\n".join(launches) + "\n.amdgcn_target \"amdgcn-amd-amdhsa--gfx950\"\n.text\n" + body + '.section .rodata,"a"\n' + descs
    open(out, "w").write(txt)

if __name__ == "__main__":
    build(sys.argv[1] if len(sys.argv) > 1 else "gated_mix__ssm_conv_s4d__ssm_conv_s5__prompt.s")
```

```python
class Asm:
    def __init__(self):
        self.lines = []
        self._lab = 0
    def e(self, s=""):
        for ln in s.split("\n"):
            self.lines.append("    " + ln.strip() if ln.strip() and not ln.strip().endswith(":") else ln.strip())
    def c(self, s):
        self.lines.append("    ; " + s)
    def label(self, name):
        self.lines.append(name + ":")
    def newlabel(self, base="L"):
        self._lab += 1
        return f"{base}_{self._lab}"
    def text(self):
        return "\n".join(self.lines) + "\n"

def v(i, n=1):
    return f"v{i}" if n == 1 else f"v[{i}:{i+n-1}]"
def s(i, n=1):
    return f"s{i}" if n == 1 else f"s[{i}:{i+n-1}]"
def a(i, n=1):
    return f"a{i}" if n == 1 else f"a[{i}:{i+n-1}]"

class RegAlloc:
    def __init__(self, start, limit, kind):
        self.cur = start; self.limit = limit; self.kind = kind; self.names = {}; self.hi = start
    def alloc(self, n=1, align=1, name=None):
        if n >= 2 and align < 2: align = 2
        c = (self.cur + align - 1) // align * align
        assert c + n <= self.limit, f"out of {self.kind} regs allocating {name} ({c}+{n} > {self.limit})"
        self.cur = c + n
        self.hi = max(self.hi, self.cur)
        if name: self.names[name] = (c, n)
        return c
    def mark(self): return self.cur
    def release(self, m): self.cur = m

SRD3 = 0x00020000

def srd(A, dst, ptr, nbytes):
    A.e(f"s_mov_b32 s{dst}, s{ptr}")
    A.e(f"s_and_b32 s{dst+1}, s{ptr+1}, 0xffff")
    A.e(f"s_mov_b32 s{dst+2}, {nbytes}")
    A.e(f"s_mov_b32 s{dst+3}, 0x{SRD3:08x}")

def srd_off(A, dst, ptr, off, nbytes):
    A.e(f"s_add_u32 s{dst}, s{ptr}, {off}")
    A.e(f"s_addc_u32 s{dst+1}, s{ptr+1}, 0")
    A.e(f"s_and_b32 s{dst+1}, s{dst+1}, 0xffff")
    A.e(f"s_mov_b32 s{dst+2}, {nbytes}")
    A.e(f"s_mov_b32 s{dst+3}, 0x{SRD3:08x}")

def kernel_header(name):
    return f""".globl {name}
.p2align 8
.type {name},@function
{name}:
"""
def kernel_desc(name, vgprs, sgprs=102, accum=None):
    if accum is None: accum = (vgprs + 3) // 4 * 4
    return f""".amdhsa_kernel {name}
  .amdhsa_next_free_vgpr {vgprs}
  .amdhsa_next_free_sgpr {sgprs}
  .amdhsa_accum_offset {accum}
  .amdhsa_group_segment_fixed_size 0
  .amdhsa_kernarg_size 160
  .amdhsa_user_sgpr_count 2
  .amdhsa_user_sgpr_kernarg_segment_ptr 1
  .amdhsa_system_sgpr_workgroup_id_x 1
.end_amdhsa_kernel
"""
KA = dict(u=0, logA=8, Aim=16, Cre_a=24, Cim_a=32, logdt_a=40, Dskip_a=48, x=56, Lre=64, Lim=72,
          Bre=80, Bim=88, Cre=96, Cim=104, logdt_b=112, Dskip_b=120, gate=128, out=136, dbg=144, ws=152)
WS_H  = 0
WS_H_SZ = 128 * 40 * 1024
WS_S  = WS_H + WS_H_SZ
WS_S_SZ = 256 * 640
WS_G  = WS_S + WS_S_SZ
WS_G_SZ = 2048 * 4
WS_UT = WS_G + WS_G_SZ
WS_UT_SZ = 640 * 4096
KR_STRIDE = 4160
WS_KR = WS_UT + WS_UT_SZ
WS_KR_SZ = 640 * KR_STRIDE
WS_AT = WS_KR + WS_KR_SZ
WS_AT_SZ = 640 * 4096
WS_GEN = WS_AT + WS_AT_SZ
WS_FL = WS_GEN + 256
WS_END = WS_FL + 256 * 128

WS_TS = 16 << 20
class Stamps:
    def __init__(self, A, S, n, enable):
        self.A = A; self.n = n; self.enable = enable; self.k = 0
        if enable:
            self.base = S.alloc(2 * n + 4, 2)
            self.rT = S.alloc(4, 4)
            A.e(f"s_memrealtime s[{self.base+2*n+2}:{self.base+2*n+3}]")
    def mark(self):
        if not self.enable: return
        assert self.k < self.n
        self.A.e(f"s_memtime s[{self.base+2*self.k}:{self.base+2*self.k+1}]")
        self.k += 1
    def flush(self, pWs, wg, vtmp, swave, region=0):
        if not self.enable: return
        A = self.A
        L = A.newlabel("stamp_skip")
        rt = self.base + 2 * self.n
        A.e(f"s_memrealtime s[{rt}:{rt+1}]")
        A.e("s_waitcnt lgkmcnt(0)")
        A.e(f"s_cmp_lg_u32 s{swave}, 0")
        A.e(f"s_cbranch_scc1 {L}")
        srd_off(A, self.rT, pWs, WS_TS + region * (1 << 17), 1 << 17)
        A.e(f"s_lshl_b32 s{rt+1}, {wg}, 7")
        A.e(f"v_mov_b32 v{vtmp}, s{rt+1}")
        for i in range(self.k):
            A.e(f"v_mov_b32 v{vtmp+1}, s{self.base+2*i}")
            A.e(f"buffer_store_dword v{vtmp+1}, v{vtmp}, s[{self.rT}:{self.rT+3}], 0 offen offset:{4*i}")
        A.e(f"v_mov_b32 v{vtmp+1}, s{rt}")
        A.e(f"buffer_store_dword v{vtmp+1}, v{vtmp}, s[{self.rT}:{self.rT+3}], 0 offen offset:124")
        A.e(f"v_mov_b32 v{vtmp+1}, s{rt+2}")
        A.e(f"buffer_store_dword v{vtmp+1}, v{vtmp}, s[{self.rT}:{self.rT+3}], 0 offen offset:120")
        A.e("s_waitcnt vmcnt(0)")
        A.label(L)
```

```python
import sys
from asmlib import *
from g1 import gen_g1
from g2 import gen_g2
from kg import gen_kg
from ut import gen_ut
from cv import gen_cv

HEADER = open("gated_mix__ssm_conv_s4d__ssm_conv_s5__prompt.s.ref").read().split("; Override launch geometry")[0]

def build(out, stamps=False):
    launches = []
    body = ""
    descs = ""
    A = Asm()
    A.e("s_cmp_lt_u32 s2, 256")
    A.e("s_cbranch_scc1 K1_G1")
    A.e("s_cmp_ge_u32 s2, 576")
    A.e("s_cbranch_scc1 K1_done")
    A.e("s_sub_u32 s3, s2, 256")
    A.e("s_cmp_ge_u32 s3, 256")
    A.e("s_cbranch_scc1 K1_KG")
    v1, s1 = gen_ut(A, "s3", lds_base=57664)
    A.label("K1_KG")
    v2, s2_ = gen_kg(A, "s3", stamps=stamps)
    A.e("s_endpgm")
    A.label("K1_G1")
    v3, s3_ = gen_g1(A, "s2", stamps=stamps, NS=3)
    A.label("K1_done")
    A.e("s_endpgm")
    body += kernel_header("k1_kernel") + A.text()
    descs += ".p2align 6\n" + kernel_desc("k1_kernel", max(v1, v2, v3), 100)
    launches.append("; @launch kernel=k1_kernel grid=(576,1,1) block=(256,1,1) lds=81920")
    A = Asm(); A._lab = 1000
    A.e("s_cmp_ge_u32 s2, 214")
    A.e("s_cbranch_scc1 K2_done")
    v1, _ = gen_cv(A, "s2", stamps=stamps)
    A.label("K2_done")
    A.e("s_endpgm")
    body += kernel_header("k2_kernel") + A.text()
    descs += ".p2align 6\n" + kernel_desc("k2_kernel", v1, 100)
    launches.append("; @launch kernel=k2_kernel grid=(214,1,1) block=(256,1,1) lds=81920")
    A = Asm(); A._lab = 2000
    A.e("s_cmp_ge_u32 s2, 256")
    A.e("s_cbranch_scc1 K3_done")
    v1, _ = gen_g2(A, "s2", stamps=stamps)
    A.label("K3_done")
    A.e("s_endpgm")
    body += kernel_header("k3_kernel") + A.text()
    descs += ".p2align 6\n" + kernel_desc("k3_kernel", v1, 100)
    launches.append("; @launch kernel=k3_kernel grid=(256,1,1) block=(256,1,1) lds=81920")
    if stamps:
        A = Asm(); A._lab = 3000
        A.e("s_cmp_ge_u32 s2, 1")
        A.e("s_cbranch_scc1 K4_done")
        A.e("s_load_dwordx2 s[4:5], s[0:1], 152")
        A.e("s_load_dwordx2 s[6:7], s[0:1], 144")
        A.e("s_waitcnt lgkmcnt(0)")
        srd(A, 12, 6, 256)
        counts = [256, 320, 213, 256]
        for r, n in enumerate(counts):
            srd_off(A, 8, 4, WS_TS + r * (1 << 17), n * 128)
            A.e("v_mov_b32 v10, -1"); A.e("v_mov_b32 v11, 0")
            A.e("v_mov_b32 v20, -1")
            for k in range((n + 63) // 64):
                A.e(f"v_add_u32 v1, {64*k}, v0")
                A.e(f"v_min_u32 v1, {n-1}, v1")
                A.e("v_lshlrev_b32 v1, 7, v1")
                A.e("buffer_load_dwordx2 v[2:3], v1, s[8:11], 0 offen offset:120")
                A.e("s_waitcnt vmcnt(0)")
                A.e("v_min_u32 v10, v10, v2"); A.e("v_max_u32 v11, v11, v3"); A.e("v_min_u32 v20, v20, v3")
            for sh in ("row_shr:1","row_shr:2","row_shr:4","row_shr:8","row_bcast:15","row_bcast:31"):
                msk = "row_mask:0xa" if sh=="row_bcast:15" else ("row_mask:0xc" if sh=="row_bcast:31" else "row_mask:0xf")
                A.e("s_nop 1")
                A.e(f"v_min_u32_dpp v10, v10, v10 {sh} {msk} bank_mask:0xf")
                A.e(f"v_max_u32_dpp v11, v11, v11 {sh} {msk} bank_mask:0xf")
                A.e(f"v_min_u32_dpp v20, v20, v20 {sh} {msk} bank_mask:0xf")
            A.e("s_nop 1")
            A.e("v_readlane_b32 s20, v10, 63"); A.e("v_readlane_b32 s21, v11, 63"); A.e("v_readlane_b32 s22, v20, 63")
            A.e("s_nop 3")
            if r == 0: A.e("s_mov_b32 s24, s20")
            A.e("s_sub_u32 s20, s20, s24"); A.e("s_sub_u32 s21, s21, s24"); A.e("s_sub_u32 s22, s22, s24")
            A.e("v_mov_b32 v4, s20"); A.e("v_mov_b32 v5, s22"); A.e("v_mov_b32 v6, s21"); A.e(f"v_mov_b32 v7, {r*12}")
            A.e("buffer_store_dwordx3 v[4:6], v7, s[12:15], 0 offen")
            A.e("s_waitcnt vmcnt(0)")
        A.label("K4_done")
        A.e("s_endpgm")
        body += kernel_header("k4_kernel") + A.text()
        descs += ".p2align 6\n" + kernel_desc("k4_kernel", 32, 48)
        launches.append("; @launch kernel=k4_kernel grid=(1,1,1) block=(64,1,1) lds=0")
    txt = HEADER + "\n".join(launches) + "\n.amdgcn_target \"amdgcn-amd-amdhsa--gfx950\"\n.text\n" + body + '.section .rodata,"a"\n' + descs
    open(out, "w").write(txt)

if __name__ == "__main__":
    build(sys.argv[1] if len(sys.argv) > 1 else "gated_mix__ssm_conv_s4d__ssm_conv_s5__prompt.s", stamps=(len(sys.argv) > 2))
```

```python
import sys
from asmlib import *
from g1 import gen_g1
from g2 import gen_g2
from kg import gen_kg
from ut import gen_ut
from cv import gen_cv

HEADER = open("gated_mix__ssm_conv_s4d__ssm_conv_s5__prompt.s.ref").read().split("; Override launch geometry")[0]

def build(out, stamps=False):
    launches = []
    body = ""
    descs = ""
    A = Asm()
    A.e("s_cmp_lt_u32 s2, 256")
    A.e("s_cbranch_scc1 K1_G1")
    A.e("s_cmp_ge_u32 s2, 576")
    A.e("s_cbranch_scc1 K1_done")
    A.e("s_sub_u32 s3, s2, 256")
    A.e("s_cmp_ge_u32 s3, 256")
    A.e("s_cbranch_scc1 K1_KG")
    v1, s1 = gen_ut(A, "s3", lds_base=57664)
    A.label("K1_KG")
    v2, s2_ = gen_kg(A, "s3", stamps=stamps)
    A.e("s_endpgm")
    A.label("K1_G1")
    v3, s3_ = gen_g1(A, "s2", stamps=stamps, NS=3)
    A.label("K1_done")
    A.e("s_endpgm")
    body += kernel_header("k1_kernel") + A.text()
    descs += ".p2align 6\n" + kernel_desc("k1_kernel", max(v1, v2, v3), 100)
    launches.append("; @launch kernel=k1_kernel grid=(576,1,1) block=(256,1,1) lds=81920")
    A = Asm(); A._lab = 1000
    A.e("s_cmp_ge_u32 s2, 214")
    A.e("s_cbranch_scc1 K2_done")
    v1, _ = gen_cv(A, "s2", stamps=stamps)
    A.label("K2_done")
    A.e("s_endpgm")
    body += kernel_header("k2_kernel") + A.text()
    descs += ".p2align 6\n" + kernel_desc("k2_kernel", v1, 100)
    launches.append("; @launch kernel=k2_kernel grid=(214,1,1) block=(256,1,1) lds=81920")
    A = Asm(); A._lab = 2000
    A.e("s_cmp_ge_u32 s2, 256")
    A.e("s_cbranch_scc1 K3_done")
    v1, _ = gen_g2(A, "s2", stamps=stamps)
    A.label("K3_done")
    A.e("s_endpgm")
    body += kernel_header("k3_kernel") + A.text()
    descs += ".p2align 6\n" + kernel_desc("k3_kernel", v1, 100)
    launches.append("; @launch kernel=k3_kernel grid=(256,1,1) block=(256,1,1) lds=81920")
    if stamps == 2:
        A = Asm(); A._lab = 3000
        A.e('s_cmp_ge_u32 s2, 1'); A.e('s_cbranch_scc1 K4_done')
        A.e('s_load_dwordx2 s[4:5], s[0:1], 152'); A.e('s_load_dwordx2 s[6:7], s[0:1], 144'); A.e('s_waitcnt lgkmcnt(0)')
        srd(A, 12, 6, 256)
        pos = 0
        for r, n in ((0, 8), (2, 3), (3, 3), (1, 2)):
            srd_off(A, 8, 4, WS_TS + r * (1 << 17) + 77 * 128, 128)
            A.e('v_lshlrev_b32 v1, 2, v0')
            A.e('buffer_load_dword v2, v1, s[8:11], 0 offen')
            A.e('s_waitcnt vmcnt(0)')
            A.e('v_readlane_b32 s20, v2, 0'); A.e('s_nop 3')
            A.e('v_subrev_u32 v2, s20, v2')
            A.e(f'v_add_u32 v1, {4*pos - 4}, v1')
            A.e('v_cmp_lt_u32 vcc, 0, v0'); A.e(f'v_cmp_ge_u32 s[22:23], {n}, v0'); A.e('s_nop 4'); A.e('s_and_b64 vcc, vcc, s[22:23]')
            A.e('s_and_saveexec_b64 s[24:25], vcc')
            A.e('buffer_store_dword v2, v1, s[12:15], 0 offen')
            A.e('s_mov_b64 exec, s[24:25]'); A.e('s_waitcnt vmcnt(0)')
            pos += n
        A.label('K4_done'); A.e('s_endpgm')
        body += kernel_header('k4_kernel') + A.text()
        descs += '.p2align 6\n' + kernel_desc('k4_kernel', 32, 48)
        launches.append('; @launch kernel=k4_kernel grid=(1,1,1) block=(64,1,1) lds=0')
    elif stamps:
        A = Asm(); A._lab = 3000
        A.e("s_cmp_ge_u32 s2, 1")
        A.e("s_cbranch_scc1 K4_done")
        A.e("s_load_dwordx2 s[4:5], s[0:1], 152")
        A.e("s_load_dwordx2 s[6:7], s[0:1], 144")
        A.e("s_waitcnt lgkmcnt(0)")
        srd(A, 12, 6, 256)
        counts = [256, 320, 213, 256]
        for r, n in enumerate(counts):
            srd_off(A, 8, 4, WS_TS + r * (1 << 17), n * 128)
            A.e("v_mov_b32 v10, -1"); A.e("v_mov_b32 v11, 0")
            A.e("v_mov_b32 v20, -1")
            for k in range((n + 63) // 64):
                A.e(f"v_add_u32 v1, {64*k}, v0")
                A.e(f"v_min_u32 v1, {n-1}, v1")
                A.e("v_lshlrev_b32 v1, 7, v1")
                A.e("buffer_load_dwordx2 v[2:3], v1, s[8:11], 0 offen offset:120")
                A.e("s_waitcnt vmcnt(0)")
                A.e("v_min_u32 v10, v10, v2"); A.e("v_max_u32 v11, v11, v3"); A.e("v_min_u32 v20, v20, v3")
            for sh in ("row_shr:1","row_shr:2","row_shr:4","row_shr:8","row_bcast:15","row_bcast:31"):
                msk = "row_mask:0xa" if sh=="row_bcast:15" else ("row_mask:0xc" if sh=="row_bcast:31" else "row_mask:0xf")
                A.e("s_nop 1")
                A.e(f"v_min_u32_dpp v10, v10, v10 {sh} {msk} bank_mask:0xf")
                A.e(f"v_max_u32_dpp v11, v11, v11 {sh} {msk} bank_mask:0xf")
                A.e(f"v_min_u32_dpp v20, v20, v20 {sh} {msk} bank_mask:0xf")
            A.e("s_nop 1")
            A.e("v_readlane_b32 s20, v10, 63"); A.e("v_readlane_b32 s21, v11, 63"); A.e("v_readlane_b32 s22, v20, 63")
            A.e("s_nop 3")
            if r == 0: A.e("s_mov_b32 s24, s20")
            A.e("s_sub_u32 s20, s20, s24"); A.e("s_sub_u32 s21, s21, s24"); A.e("s_sub_u32 s22, s22, s24")
            A.e("v_mov_b32 v4, s20"); A.e("v_mov_b32 v5, s22"); A.e("v_mov_b32 v6, s21"); A.e(f"v_mov_b32 v7, {r*12}")
            A.e("buffer_store_dwordx3 v[4:6], v7, s[12:15], 0 offen")
            A.e("s_waitcnt vmcnt(0)")
        A.label("K4_done")
        A.e("s_endpgm")
        body += kernel_header("k4_kernel") + A.text()
        descs += ".p2align 6\n" + kernel_desc("k4_kernel", 32, 48)
        launches.append("; @launch kernel=k4_kernel grid=(1,1,1) block=(64,1,1) lds=0")
    txt = HEADER + "\n".join(launches) + "\n.amdgcn_target \"amdgcn-amd-amdhsa--gfx950\"\n.text\n" + body + '.section .rodata,"a"\n' + descs
    open(out, "w").write(txt)

if __name__ == "__main__":
    build(sys.argv[1] if len(sys.argv) > 1 else "gated_mix__ssm_conv_s4d__ssm_conv_s5__prompt.s", stamps=(int(sys.argv[2]) if len(sys.argv) > 2 else 0))
```
